```python
import torch

def _softmax(x, axis=-1):
    return torch.softmax(x, dim=axis)
def _gelu(x):
    return torch.nn.functional.gelu(x, approximate="tanh")
def _silu(x):
    return torch.nn.functional.silu(x)
def _sigmoid(x):
    return torch.sigmoid(x)
def _layernorm(x, axis=-1, eps=1e-5):
    m = x.mean(dim=axis, keepdim=True)
    v = x.var(dim=axis, keepdim=True, unbiased=False)
    return (x - m) / torch.sqrt(v + eps)
def _scatter_add(tgt, idx, src, axis=0):
    return tgt.clone().index_add_(axis, idx, src)
def _segment_sum(src, seg, n):
    out = torch.zeros((n,) + src.shape[1:], dtype=src.dtype)
    return out.index_add_(0, seg, src)
def _pad(x, pw):
    flat = tuple(v for pair in reversed(pw) for v in pair)
    return torch.nn.functional.pad(x, flat)

kernel_name = 'standalone__mha_block_cached__near_ridge'

def setup_inputs():

    _w = (lambda a: (lambda t: t.to(torch.bfloat16) if t.is_floating_point() else t)(torch.as_tensor(a)))
    B, Sq, D = 8, 288, 512
    H, Sk, Dh = 32, 1024, 128
    return {
        "x": _w((lambda *s: torch.randn(*s, dtype=torch.bfloat16) * 0.8)(B, Sq, D)),
        "k_cache": _w((lambda *s: torch.randn(*s, dtype=torch.bfloat16) * 0.8)(B, H, Sk, Dh)),
        "v_cache": _w((lambda *s: torch.randn(*s, dtype=torch.bfloat16) * 0.05)(B, H, Sk, Dh)),
        "wq": _w((lambda *s: torch.randn(*s, dtype=torch.bfloat16) * 0.8)(D, H * Dh) * (D ** -0.5)),
        "wo": _w((lambda *s: torch.randn(*s, dtype=torch.bfloat16) * 0.05)(H * Dh, D) * ((H * Dh) ** -0.5)),
    }

def reference(x, k_cache, v_cache, wq, wo):
    B, Sq, D = x.shape
    H, Dh = 32, 128
    q = (lambda x, *d: x.permute(*d))((x @ wq).reshape(B, Sq, H, Dh), 0, 2, 1, 3)
    scores = torch.einsum("bhqd,bhkd->bhqk", q, k_cache) * (Dh ** -0.5)
    p = _softmax(scores, axis=-1)
    o = torch.einsum("bhqk,bhkd->bhqd", p, v_cache)
    return (lambda x, *d: x.permute(*d))(o, 0, 2, 1, 3).reshape(B, Sq, H * Dh) @ wo
```

```python
import re

def R(kind, lo, n=1):
    return [f"{kind}{lo+i}" for i in range(n)]

def rng(kind, lo, n):
    return f"{kind}{lo}" if n == 1 else f"{kind}[{lo}:{lo+n-1}]"

class Reg:
    def __init__(self, kind, lo, n=1):
        self.kind, self.lo, self.n = kind, lo, n
    def __str__(self): return rng(self.kind, self.lo, self.n)
    def regs(self): return R(self.kind, self.lo, self.n)
    def __getitem__(self, i):
        if isinstance(i, slice):
            a = i.start or 0; b = i.stop if i.stop is not None else self.n
            assert 0 <= a < b <= self.n
            return Reg(self.kind, self.lo + a, b - a)
        assert 0 <= i < self.n
        return Reg(self.kind, self.lo + i, 1)
def V(lo, n=1): return Reg("v", lo, n)
def A(lo, n=1): return Reg("a", lo, n)
def S(lo, n=1): return Reg("s", lo, n)

def regs_of(x):
    if isinstance(x, Reg): return x.regs()
    if isinstance(x, str) and x in ("vcc", "exec", "m0", "scc"): return [x]
    return []

class I:
    def __init__(self, text, kind, rd=(), wr=(), tag=None, cost=None, **kw):
        self.text, self.kind = text, kind
        self.rd = [r for x in rd for r in regs_of(x)]
        self.wr = [r for x in wr for r in regs_of(x)]
        self.tag = tag
        self.kw = kw
    def __repr__(self): return self.text

def fmt(x):
    if isinstance(x, float):
        return repr(x)
    if isinstance(x, int):
        return str(x) if -16 <= x <= 64 else hex(x & 0xffffffff)
    return str(x)

def mfma(d, a, b, c=None):
    c = d if c is None else c
    return I(f"v_mfma_f32_16x16x32_bf16 {d}, {a}, {b}, {fmt(c)}", "mfma", rd=[a, b, c], wr=[d], srcc=regs_of(c), ab=regs_of(a)+regs_of(b))
def valu(op, d, *src, extra="", rdd=False, wr2=()):
    kind = "trans" if op.split("_")[1] in ("exp", "rcp", "log", "rsq", "sqrt") else "valu"
    rd = list(src) + ([d] if rdd else []) + ["exec"]
    return I(f"{op} {d}, " + ", ".join(fmt(s) for s in src) + extra, kind, rd=rd, wr=[d] + list(wr2), op=op)
def vcmp(op, d, a, b):
    return I(f"{op} {d}, {fmt(a)}, {fmt(b)}", "valu", rd=[a, b, "exec"], wr=[d], op=op)
def cndmask(d, f, t, m="vcc"):
    return I(f"v_cndmask_b32 {d}, {fmt(f)}, {fmt(t)}, {m}", "valu", rd=[f, t, m, "exec"], wr=[d], op="v_cndmask_b32", maskrd=regs_of(m))
def vswap(op, a, b):
    return I(f"{op} {a}, {b}", "valu", rd=[a, b, "exec"], wr=[a, b], op=op)
def rfl(d, s):
    return I(f"v_readfirstlane_b32 {d}, {s}", "valu", rd=[s, "exec"], wr=[d], op="v_readfirstlane_b32")
def salu(op, d, *src, scc=True):
    wr = [d] + (["scc"] if scc and op not in ("s_mov_b32", "s_mov_b64", "s_mul_i32", "s_cselect_b32", "s_movk_i32") else [])
    rd = list(src) + (["scc"] if op in ("s_addc_u32", "s_subb_u32", "s_cselect_b32", "s_cselect_b64") else [])
    return I(f"{op} {d}, " + ", ".join(fmt(s) for s in src), "salu", rd=rd, wr=wr, op=op)
def scmp(op, a, b):
    return I(f"{op} {fmt(a)}, {fmt(b)}", "salu", rd=[a, b], wr=["scc"], op=op)
def branch(op, label):
    return I(f"{op} {label}", "branch", rd=["scc"] if "scc" in op else (["vcc"] if "vcc" in op else []), op=op, target=label)
def label(name): return I(f"{name}:", "label", name=name)
def ds_read(op, d, addr, off=0):
    assert 0 <= off < 65536, off
    return I(f"{op} {d}, {addr}" + (f" offset:{off}" if off else ""), "ds_r", rd=[addr, "exec"], wr=[d])
def ds_write(op, addr, data, off=0):
    assert 0 <= off < 65536, off
    return I(f"{op} {addr}, {data}" + (f" offset:{off}" if off else ""), "ds_w", rd=[addr, data, "exec"])
def buf_load(d, voff, srd, soff=0, off=0, flags="", op="buffer_load_dwordx4", tag=None):
    assert 0 <= off < 4096
    return I(f"{op} {d}, {voff}, {srd}, {fmt(soff)} offen" + (f" offset:{off}" if off else "") + (" " + flags if flags else ""), "vm_ld", rd=[voff, srd, soff, "exec"], wr=[d], tag=tag)
def buf_dma(voff, srd, soff=0, off=0, flags="", tag=None):
    assert 0 <= off < 4096
    return I(f"buffer_load_dwordx4 {voff}, {srd}, {fmt(soff)} offen" + (f" offset:{off}" if off else "") + (" " + flags if flags else "") + " lds", "vm_dma", rd=[voff, srd, soff, "m0", "exec"], tag=tag)
def buf_store(data, voff, srd, soff=0, off=0, flags="", op="buffer_store_dwordx4", tag=None):
    assert 0 <= off < 4096
    return I(f"{op} {data}, {voff}, {srd}, {fmt(soff)} offen" + (f" offset:{off}" if off else "") + (" " + flags if flags else ""), "vm_st", rd=[data, voff, srd, soff, "exec"], tag=tag, data=regs_of(data))
def smem(text, wr, rd=()):
    return I(text, "smem", rd=rd, wr=wr)
def nop(n=0): return I(f"s_nop {n}", "nop", n=n)
def barrier(): return I("s_barrier", "barrier")
def raw(text, kind="salu", rd=(), wr=()): return I(text, kind, rd=rd, wr=wr)
class Wait(I):
    def __init__(self, vm=None, lgkm=None, regs=(), tags=()):
        super().__init__("s_waitcnt", "wait")
        self.vm, self.lgkm = vm, lgkm
        self.regs = [r for x in regs for r in regs_of(x)]
        self.tags = tags
        self.rvm = vm if isinstance(vm, int) else None
        self.rlg = lgkm if isinstance(lgkm, int) else None
    def render(self):
        p = []
        if self.vm is not None:
            p.append(f"vmcnt({min(63, self.rvm if self.rvm is not None else 63)})")
        if self.lgkm is not None:
            p.append(f"lgkmcnt({min(15, self.rlg if self.rlg is not None else 15)})")
        return "s_waitcnt " + " ".join(p)

def wait_lgkm(*regs): return Wait(lgkm="auto", regs=regs)
def wait_vm(regs=(), tags=()): return Wait(vm="auto", regs=regs, tags=tags)

def render(ins):
    out = []
    for i in ins:
        t = i.render() if isinstance(i, Wait) else i.text
        out.append(t if i.kind == "label" else "  " + t)
    return "\n".join(out)

def ev(x, env):
    return x(env) if callable(x) else x

def resolve_waits(trace):
    for _ in range(2):
        lg, vm = [], []
        for ins, env in trace:
            k = ins.kind
            if k in ("ds_r", "ds_w"): lg.append((ins.wr, None))
            elif k == "smem": lg.append((ins.wr, "smem"))
            elif k in ("vm_ld", "vm_dma", "vm_st"): vm.append((ins.wr, ev(ins.tag, env)))
            elif k == "wait":
                if ins.lgkm == "auto":
                    idx = [j for j, (r, t) in enumerate(lg) if set(r) & set(ins.regs)]
                    if idx:
                        n = len(lg) - 1 - max(idx)
                        if any(t == "smem" for r, t in lg): n = 0
                        ins.rlg = n if ins.rlg is None else min(ins.rlg, n)
                if ins.vm == "auto":
                    tg = [ev(t, env) for t in ins.tags]
                    idx = [j for j, (r, t) in enumerate(vm) if (set(r) & set(ins.regs)) or (t is not None and t in tg)]
                    if idx:
                        n = len(vm) - 1 - max(idx)
                        ins.rvm = n if ins.rvm is None else min(ins.rvm, n)
                if ins.lgkm is not None:
                    n = min(15, ins.rlg if ins.rlg is not None else 15)
                    if n == 0 or not any(t == "smem" for r, t in lg):
                        lg = lg[len(lg) - n:] if n < len(lg) else lg
                if ins.vm is not None:
                    n = min(63, ins.rvm if ins.rvm is not None else 63)
                    vm = vm[len(vm) - n:] if n < len(vm) else vm

def check(trace, name=""):
    probs = []
    lg, vm = [], []
    hist = []
    pos = 0
    def need(cond_fn, dist, what, ins):
        for h, p in reversed(hist[-40:]):
            if pos - p - 1 >= dist and h.kind != "nop":
                if pos - p - 1 >= 24: break
            if cond_fn(h) and (pos - p - 1) < dist:
                probs.append((f"{name}: hazard {what}: '{h.text}' -> '{ins.text}' dist {pos-p-1} < {dist}", ins, dist - (pos-p-1)))
    for ins, env in trace:
        k = ins.kind
        if k == "label": continue
        rd, wr = set(ins.rd), set(ins.wr)
        for q, nm in ((lg, "lgkm"), (vm, "vm")):
            for r, t in q:
                if set(r) & (rd | wr):
                    if k in ("ds_r",) and nm == "lgkm" and not (set(r) & rd): continue
                    if k == "vm_ld" and nm == "vm" and not (set(r) & rd): continue
                    probs.append((f"{name}: missing {nm} wait for {sorted(set(r) & (rd|wr))[:2]} at '{ins.text}'", ins, None))
        vr = {r for r in rd if r[0] in "va" and r != "vcc"}
        vw = {r for r in wr if r[0] in "va" and r != "vcc"}
        isv = lambda h: h.kind in ("valu", "trans")
        if k == "mfma":
            need(lambda h: isv(h) and set(h.wr) & vr, 2, "valu->mfma", ins)
            need(lambda h: h.kind == "mfma" and set(h.wr) & set(ins.kw["ab"]), 8, "mfma->mfma AB", ins)
            need(lambda h: h.kind == "mfma" and set(h.wr) & set(ins.kw["srcc"]) and set(h.wr) != set(ins.kw["srcc"]), 6, "mfma->mfma C partial", ins)
            need(lambda h: isv(h) and "exec" in h.wr, 4, "exec->mfma", ins)
        if k in ("valu", "trans"):
            need(lambda h: h.kind == "mfma" and set(h.wr) & (vr | vw), 8, "mfma->valu", ins)
            need(lambda h: h.kind == "mfma" and set(h.kw["srcc"]) & vw, 3, "mfma srcC WAR", ins)
            if k == "valu": need(lambda h: h.kind == "trans" and set(h.wr) & vr, 1, "trans->valu", ins)
            need(lambda h: h.kind == "vm_st" and set(h.kw.get("data", [])) & vw, 2, "store data WAR", ins)
            sr = {r for r in rd if r[0] == "s" and r != "scc"} | set(ins.kw.get("maskrd", []))
            need(lambda h: isv(h) and set(h.wr) & sr, 2, "valu sgpr->valu", ins)
            op = ins.kw.get("op", "")
            if "permlane" in op: need(lambda h: isv(h) and set(h.wr) & vr, 2, "valu->permlane", ins)
            if "readfirstlane" in op or "readlane" in op: need(lambda h: isv(h) and set(h.wr) & vr, 1, "valu->readlane", ins)
        if k in ("ds_r", "ds_w", "vm_ld", "vm_dma", "vm_st"):
            need(lambda h: h.kind == "mfma" and set(h.wr) & (vr | vw), 8, "mfma->mem", ins)
        if k in ("ds_r", "vm_ld"):
            need(lambda h: h.kind == "vm_st" and set(h.kw.get("data", [])) & vw, 1, "store data WAR", ins)
        if k in ("vm_ld", "vm_dma", "vm_st"):
            sr = {r for r in rd if r[0] == "s"}
            need(lambda h: isv(h) and set(h.wr) & sr, 5, "valu sgpr->vmem", ins)
        if k == "vm_dma":
            need(lambda h: h.kind == "salu" and "m0" in h.wr, 1, "m0->dma", ins)
        if k == "salu" or k == "branch":
            need(lambda h: isv(h) and set(h.wr) & {r for r in rd if r[0] == "s" or r == "vcc"}, 1, "valu sgpr->salu(pad)", ins)
        if k in ("ds_r", "ds_w"): lg.append((ins.wr, None))
        elif k == "smem": lg.append((ins.wr, "smem"))
        elif k in ("vm_ld", "vm_dma", "vm_st"): vm.append((ins.wr, ev(ins.tag, env)))
        elif k == "wait":
            if ins.lgkm is not None:
                n = min(15, ins.rlg if ins.rlg is not None else 15)
                if n == 0 or not any(t == "smem" for r, t in lg):
                    lg = lg[len(lg) - n:] if n < len(lg) else lg
            if ins.vm is not None:
                n = min(63, ins.rvm if ins.rvm is not None else 63)
                vm = vm[len(vm) - n:] if n < len(vm) else vm
                tg = [ev(t, env) for t in ins.tags]
                for r, t in vm:
                    if t is not None and t in tg: probs.append((f"{name}: vm tag {t} not covered", ins, None))
        if len(vm) > 63: probs.append((f"{name}: vmcnt overflow at '{ins.text}'", ins, None))
        hist.append((ins, pos))
        pos += (ins.kw["n"] + 1) if k == "nop" else 1
    return probs

def est_cycles(ins):
    t = 0; prev = None; mf_ready = 0; n_m = 0
    for i in ins:
        k = i.kind
        if k == "label": continue
        sh = prev is not None and prev.kind == "mfma"
        if k == "mfma":
            t = max(t, mf_ready - 4); mf_ready = max(t, mf_ready) + 16; t += 4; n_m += 1
        elif k in ("valu", "trans"):
            t += (4 if sh else 0) + (8 if k == "trans" else 4)
        elif k in ("ds_r", "ds_w"): t += 8 if sh else 12
        elif k.startswith("vm"): t += 20 if sh else 24
        elif k == "nop": t += 4 * (i.kw["n"] + 1)
        elif k == "barrier": t += 50
        else: t += 4
        prev = i
    return t, n_m


class Prog:
    def __init__(self, name):
        self.name = name; self.segs = []
    def seg(self, ins, envs=None, fix=True):
        self.segs.append([list(ins), envs or [{}], fix]); return self.segs[-1][0]
    def trace(self):
        t = []
        for ins, envs, _ in self.segs:
            for e in envs: t += [(i, e) for i in ins]
        return t
    def finalize(self, verbose=True):
        nfix = 0
        for ins, envs, _ in self.segs:
            if len(envs) > 1:
                assert ins[-1].kind == "branch" and ins[0].kind == "label" and ins[-1].kw["target"] == ins[0].kw["name"]
                cmpi = [i for i in ins if "scc" in i.wr][-1]
                assert cmpi.kw.get("op") == "s_cmp_lg_u32", cmpi
                cnt = cmpi.rd[0]
                w = [i for i in ins if cnt in i.wr]
                assert len(w) == 1 and w[0].text.startswith(f"s_sub_u32 {cnt}, {cnt}, 1"), (cnt, w)
                init = None
                for ins2, e2, _ in self.segs:
                    if ins2 is ins: break
                    for i in ins2:
                        if cnt in i.wr: init = i
                assert init.text == f"s_mov_b32 {cnt}, {len(envs)}", (init, len(envs))
        for it in range(2000):
            tr = self.trace()
            for i, _ in tr:
                if isinstance(i, Wait):
                    if i.vm == "auto": i.rvm = None
                    if i.lgkm == "auto": i.rlg = None
            resolve_waits(tr)
            probs = check(tr, self.name)
            fixable = [p for p in probs if p[2] is not None]
            if not fixable: break
            done = set()
            progress = False
            for msg, ins, d in fixable:
                if id(ins) in done: continue
                for seg, envs, fix in self.segs:
                    for j, x in enumerate(seg):
                        if x is ins:
                            d = max(p[2] for p in fixable if p[1] is ins)
                            if not fix and verbose: print("NOTE fixing hazard in tuned segment:", msg)
                            seg.insert(j, nop(d - 1)); nfix += 1; progress = True
                            break
                done.add(id(ins))
                break
            if not progress: break
        rest = [p[0] for p in probs]
        if verbose: print(f"{self.name}: inserted {nfix} nops; remaining problems: {len(rest)}")
        for m in rest[:40]: print("   PROBLEM", m)
        assert not rest
    def text(self):
        return "\n".join(render(ins) for ins, _, _ in self.segs)
```

```python
import sys, math, argparse
from asmlib import *

NAME = "standalone__mha_block_cached__near_ridge"
WS_O = 0
WS_WOT = 0x1400000
WS_DBG = 0x2000000
QBUF = 53248
SCALE = math.log2(math.e) / math.sqrt(128.0)
import struct
def f2u(x): return struct.unpack("<I", struct.pack("<f", x))[0]

sW = S(3)
srdX, srdWQ, srdK, srdV, srdO, srdWO, srdWT, srdOUT, srdDBG = [S(4 + 4 * i, 4) for i in range(9)]
sB, sH, sT0, sT1, sT2, sT3, sT4, sT5 = [S(40 + i) for i in range(8)]
sARG = S(48, 16)
sC = S(64, 2)
sQx, sQw, sBufD, sBufR, sDelta, sCnt = [S(66 + i) for i in range(6)]
sKoff, sVoff, sRing, sW4k = [S(72 + i) for i in range(4)]
sExecHi = S(76, 2)
sStamp = S(80, 16)
vKa = [V(1), V(2)]
vVa = [[V(3), V(4)], [V(5), V(6)]]
vDA, vDB = V(7), V(8)
vL = [V(9 + i) for i in range(5)]
vLane = V(14); vT = [V(15)] + [V(249 + i) for i in range(7)]
vXr, vXc, vWx, vWy, vXA, vXB, vXC, vWA, vWB = [V(240 + i) for i in range(9)]
def G(i): return V(16 + 4 * i, 4)
def acc(q, dt): return G(8 * q + dt)
def Qf(q, s): return acc(q, 2 * s)
_pool = [G(i) for i in range(40, 56)] + [acc(q, 2 * s + 1) for q in range(5) for s in range(4)]
def St(j): return _pool[j]
def Pf(par, f): return _pool[18 + 9 * par + f]
def Of(q, dt): return A(4 * (8 * q + dt), 4)
def Kf(b, s): return A(160 + 16 * b + 4 * s, 4)
def Vf(dt, c): return A(192 + 8 * (dt % 4) + 4 * c, 4)
def Bx(q, ks): return G(40 + 2 * q + ks)
def Aw(dt, ks): return A(192 + 8 * (dt % 4) + 4 * ks, 4)

def srd(dst, base_lo, base_hi, off, size):
    return [salu("s_add_u32", dst[0], base_lo, off), salu("s_addc_u32", dst[1], base_hi, 0),
            salu("s_mov_b32", dst[2], size), salu("s_mov_b32", dst[3], 0x20000)]

class Opt: pass

def stamp(o, idx):
    if not o.stamps: return []
    return [smem(f"s_memrealtime {sStamp[2*idx:2*idx+2]}", [sStamp[2*idx:2*idx+2]]), Wait(lgkm=0)]

def stamp_store(o, n):
    if not o.stamps: return []
    ins = [salu("s_lshl_b32", sT0, S(2), 2), salu("s_add_u32", sT0, sT0, sW), salu("s_lshl_b32", sT0, sT0, 6),
           salu("s_add_u32", sT0, sT0, WS_DBG + o.dbg_off)]
    ins += srd(srdDBG, sARG[14], sARG[15], sT0, 64)
    ins += [valu("v_mov_b32", vT[1], 0)]
    for k in range(0, n):
        ins += [valu("v_mov_b32", vT[2], sStamp[2 * k]), nop(1), buf_store(vT[2], vT[1], srdDBG, 0, 4 * k, op="buffer_store_dword"), nop(1)]
    return ins

def head_A(o):
    ins = [scmp("s_cmp_ge_u32", S(2), 256), branch("s_cbranch_scc1", "L_exitA"),
           smem(f"s_load_dwordx16 {sARG}, s[0:1], 0", [sARG])]
    if o.stamps: ins += [smem(f"s_memrealtime {sStamp[0:2]}", [sStamp[0:2]])]
    t0, t1, t2, t3 = vT[1], vT[2], vT[3], vT[4]
    ins += [valu("v_lshrrev_b32", t0, 6, V(0)), valu("v_and_b32", vLane, 63, V(0)), rfl(sW, t0)]
    if o.map == "m1":
        ins += [salu("s_and_b32", sB, S(2), 7), salu("s_lshr_b32", sH, S(2), 3)]
    else:
        ins += [salu("s_and_b32", sT0, S(2), 1), salu("s_lshl_b32", sT0, sT0, 2), salu("s_lshr_b32", sT1, S(2), 3), salu("s_and_b32", sT1, sT1, 3),
                salu("s_add_u32", sB, sT0, sT1),
                salu("s_lshr_b32", sT0, S(2), 1), salu("s_and_b32", sT0, sT0, 3), salu("s_lshl_b32", sT0, sT0, 3), salu("s_lshr_b32", sT1, S(2), 5),
                salu("s_add_u32", sH, sT0, sT1)]
    l = vLane
    ins += [valu("v_bfe_u32", t0, l, 2, 3), valu("v_lshlrev_b32", t0, 10, t0),
            valu("v_lshrrev_b32", t1, 5, l), valu("v_lshl_add_u32", t0, t1, 6, t0),
            valu("v_and_b32", t1, 3, l), valu("v_lshl_add_u32", t0, t1, 4, t0),
            salu("s_lshl_b32", sT0, sW, 16), valu("v_add_u32", vXA, sT0, t0),
            valu("v_add_u32", vXB, 8192, vXA), valu("v_xor_b32", vXB, 32, vXB),
            salu("s_lshl_b32", sT0, sW, 13), salu("s_add_u32", sT0, sT0, 256 * 1024), valu("v_add_u32", vXC, sT0, t0),
            salu("s_and_b32", sT1, sW, 1), salu("s_lshl_b32", sT1, sT1, 5), valu("v_xor_b32", vXC, sT1, vXC)]
    ins += [valu("v_lshrrev_b32", t2, 4, l), valu("v_lshlrev_b32", t2, 6, t2), valu("v_lshl_add_u32", t2, t1, 4, t2),
            valu("v_bfe_u32", t3, l, 2, 2),
            valu("v_lshl_add_u32", vWA, t3, 13, t2), salu("s_lshl_b32", sT0, sW, 17), valu("v_add_u32", vWA, sT0, vWA), valu("v_xor_b32", vWB, 32, vWA),
            valu("v_lshl_add_u32", vDA, t3, 8, t2), salu("s_lshl_b32", sW4k, sW, 12), valu("v_add_u32", vDA, sW4k, vDA), valu("v_xor_b32", vDB, 32, vDA)]
    ins += [Wait(lgkm=0)]
    ins += [salu("s_mul_i32", sT0, sB, 294912)] + srd(srdX, sARG[0], sARG[1], sT0, 294912)
    ins += [salu("s_lshl_b32", sT0, sH, 8), salu("s_sub_u32", sT1, 4194304, sT0)] + srd(srdWQ, sARG[6], sARG[7], sT0, sT1)
    return ins

def q_dmas(o, soff_x, soff_w, buf, tag):
    out = []
    fx, fw = o.fx, o.fw
    for t in range(4):
        for hh in range(2):
            out.append([salu("s_add_u32", sT0, soff_x, t * 16384), salu("s_add_u32", "m0", sT2, t * 2048 + hh * 1024), None,
                        buf_dma(vXA if hh == 0 else vXB, srdX, sT0, 0, fx, tag=tag)])
    out.append([salu("s_add_u32", "m0", sT3, 32768), None, buf_dma(vXC, srdX, soff_x, 0, fx, tag=tag)])
    for i in range(4):
        out.append([salu("s_add_u32", sT0, soff_w, i * 32768), salu("s_add_u32", "m0", sT1, 36864 + i * 1024), None,
                    buf_dma(vWA if i < 2 else vWB, srdWQ, sT0, 0, fw, tag=tag)])
    pre = [salu("s_lshl_b32", sT2, sW, 13), salu("s_add_u32", sT2, sT2, buf), salu("s_lshl_b32", sT3, sW, 10), salu("s_add_u32", sT3, sT3, buf),
           salu("s_add_u32", sT1, sW4k, buf)]
    return pre, out

def kv_dma(o, kind, stage_soff, m0val, tag):
    srd_ = srdK if kind == "K" else srdV
    out = []
    for i in range(4):
        v = (vDA if i < 2 else vDB) if kind == "K" else (vDA if i % 2 == 0 else vDB)
        out.append((list(m0val) + [None] if i == 0 else []) + [buf_dma(v, srd_, stage_soff, i * 1024, o.fkv, tag=tag)])
    return out

def flat(groups):
    return [nop(0) if x is None else x for g in groups for x in g]

def startup_A(o):
    ins = []
    ins += [salu("s_mov_b32", sQx, 0), salu("s_mov_b32", sQw, 0)]
    pre, g = q_dmas(o, sQx, sQw, QBUF, ("Q", 0)); ins += pre + flat(g)
    ins += [salu("s_mov_b32", sQx, 128), salu("s_mov_b32", sQw, 524288)]
    pre, g = q_dmas(o, sQx, sQw, 2 * QBUF, ("Q", 1)); ins += pre + flat(g)
    ins += [salu("s_mov_b32", sQx, 256), salu("s_mov_b32", sQw, 2 * 524288), salu("s_mov_b32", sBufD, 0), salu("s_mov_b32", sBufR, QBUF)]
    ins += [salu("s_lshl_b32", sT0, sB, 5), salu("s_add_u32", sT0, sT0, sH), salu("s_lshl_b32", sT0, sT0, 18)]
    ins += srd(srdK, sARG[2], sARG[3], sT0, 262144) + srd(srdV, sARG[4], sARG[5], sT0, 262144)
    ins += [salu("s_mul_i32", sT0, sB, 18 * 131072), salu("s_lshl_b32", sT1, sH, 12), salu("s_add_u32", sT0, sT0, sT1),
            salu("s_sub_u32", sT1, 18874368, sT0), salu("s_add_u32", sT0, sT0, WS_O)] + srd(srdO, sARG[14], sARG[15], sT0, sT1)
    ins += srd(srdWO, sARG[8], sARG[9], 0, 4194304) + srd(srdWT, sARG[14], sARG[15], WS_WOT, 4194304)
    ins += [salu("s_mov_b32", sC[0], f2u(SCALE)), salu("s_mov_b32", sC[1], f2u(SCALE)),
            salu("s_mov_b32", sExecHi[0], 0), salu("s_mov_b32", sExecHi[1], -1)]
    l = vLane; t0, t1, t2, t3, t4 = vT[1], vT[2], vT[3], vT[4], vT[5]
    ins += [valu("v_lshrrev_b32", t0, 4, l), valu("v_bfe_u32", t1, l, 3, 1), valu("v_lshlrev_b32", t2, 1, t1), valu("v_xor_b32", t2, t2, t0),
            valu("v_lshlrev_b32", t2, 4, t2)]
    ins += [valu("v_lshl_add_u32", t3, t1, 10, t2), valu("v_and_b32", t4, 7, l), valu("v_lshl_add_u32", t3, t4, 6, t3),
            salu("s_lshl_b32", sT0, sW, 13), salu("s_add_u32", sT0, sT0, QBUF), valu("v_add_u32", vXr, sT0, t3),
            salu("s_and_b32", sT0, sW, 1), salu("s_lshl_b32", sT0, sT0, 11), salu("s_add_u32", sT0, sT0, QBUF + 32768), valu("v_add_u32", vXc, sT0, t3)]
    ins += [valu("v_bfe_u32", t3, l, 2, 2), valu("v_lshl_add_u32", t3, t3, 10, t2), valu("v_and_b32", t4, 3, l), valu("v_lshl_add_u32", t3, t4, 6, t3),
            salu("s_lshr_b32", sT0, sW, 1), salu("s_lshl_b32", sT0, sT0, 13), valu("v_add_u32", vKa[0], sT0, t3), valu("v_xor_b32", vKa[1], 8192, vKa[0])]
    ins += [valu("v_bfe_u32", t3, l, 2, 2), valu("v_lshlrev_b32", t3, 6, t3), valu("v_lshl_add_u32", t3, t4, 3, t3),
            valu("v_lshl_add_u32", t2, t0, 10, t3), valu("v_and_b32", t1, 1, t0), valu("v_lshl_add_u32", t2, t1, 5, t2),
            salu("s_add_u32", sT0, sT0, 65536), valu("v_add_u32", vVa[0][0], sT0, t2), valu("v_xor_b32", vVa[0][1], 32, vVa[0][0]),
            valu("v_xor_b32", vVa[1][0], 8192, vVa[0][0]), valu("v_xor_b32", vVa[1][1], 32, vVa[1][0])]
    ins += [valu("v_bfe_u32", t3, l, 2, 2), valu("v_lshlrev_b32", t3, 6, t3), valu("v_lshl_add_u32", t3, t0, 11, t3),
            valu("v_lshlrev_b32", t1, 1, t1), valu("v_xor_b32", t1, t1, t4), valu("v_lshl_add_u32", t3, t1, 4, t3),
            valu("v_lshrrev_b32", t4, 1, t4), valu("v_lshl_add_u32", t3, t4, 3, t3),
            valu("v_add_u32", vWx, QBUF + 36864, t3), valu("v_xor_b32", vWy, 8, vWx)]
    for q in range(5):
        ins += [valu("v_mov_b32", vL[q], 0)]
        for dt in range(8):
            for r in range(4):
                ins += [valu("v_mov_b32", acc(q, dt)[r], 0), valu("v_accvgpr_write_b32", Of(q, dt)[r], 0)]
    ins += [wait_vm(tags=[("Q", 0)]), barrier()]
    ins += stamp(o, 1)
    for dt in range(2): ins += a_loads(dt)
    for q in range(5):
        for ks in range(2): ins += [b_load(q, ks)]
    ins += [salu("s_mov_b32", sCnt, 6)]
    return ins

def a_loads(dt):
    s, T = dt >> 1, dt & 1
    return [ds_read("ds_read_b64_tr_b16", Aw(dt, ks)[2 * k:2 * k + 2], vWx if T == 0 else vWy, ks * 8192 + k * 1024 + s * 256) for ks in range(2) for k in range(2)]
def b_load(q, ks):
    return ds_read("ds_read_b128", Bx(q, ks), vXr if q < 4 else vXc, (q * 2048 if q < 4 else 0) + ks * 512)
def k_load(n, kt, s):
    return ds_read("ds_read_b128", Kf(kt & 1, s), vKa[kt >> 1], (n & 1) * 16384 + (kt & 1) * 4096 + s * 256)
def v_load(n, dt, c, jh):
    return ds_read("ds_read_b64_tr_b16", Vf(dt, c)[2 * jh:2 * jh + 2], vVa[c][dt & 1], (n & 1) * 16384 + jh * 4096 + (dt >> 1) * 256)

def q_stage(o, mode):
    gaps = [[] for _ in range(80)]
    M = [mfma(acc(q, dt), Aw(dt, ks), Bx(q, ks)) for dt in range(8) for q in range(5) for ks in range(2)]
    pre = []
    when = {2: 0, 3: 5, 4: 12, 5: 22, 6: 32, 7: 42}
    for dt, g0 in when.items():
        for k, ld in enumerate(a_loads(dt)): gaps[g0 + k].append(ld)
    if mode == "loop":
        p_, groups = q_dmas(o, sQx, sQw, sBufD, lambda e: ("Q", e["s"] + 2))
        pre += p_
    else:
        groups = []
        lst = [("K", 0), ("K", 1), ("K", 2)] if mode == "s6" else [("K", 3), ("V", 0), ("V", 1)]
        for kind, st in lst:
            m0 = [salu("s_mov_b32", sT0, st * 16384), salu("s_add_u32", "m0", sW4k, st * 16384 + (65536 if kind == "V" else 0))]
            groups += kv_dma(o, kind, sT0, m0, (kind, st))
    free = [g for g in range(1, 58) if not gaps[g]]
    step = len(free) // len(groups)
    for k, grp in enumerate(groups):
        sal = [x for x in grp[:-1] if x is not None]
        a, b = free[k * step], free[k * step + 1]
        gaps[a] += sal; gaps[b].insert(0, grp[-1])
    for dt in range(8):
        regs = [Aw(dt, 0), Aw(dt, 1)]
        if dt == 0: pre.append(wait_lgkm(Aw(0, 0), Bx(0, 0)))
        else: gaps[10 * dt - 1].insert(0, wait_lgkm(*(regs + ([Aw(7, 0), Aw(7, 1)] if dt == 6 else []))))
    for t in range(1, 10):
        q, ks = t >> 1, t & 1
        gaps[t - 1].insert(0, wait_lgkm(Bx(q, ks), Aw(0, ks)))
    if mode == "loop": tg = [lambda e: ("Q", e["s"] + 1)]
    elif mode == "s6": tg = [("Q", 7)]
    else: tg = [("K", 0)]
    gaps[58] += [wait_vm(tags=tg)]
    gaps[59] += [barrier()]
    if mode != "s7":
        gaps[50] += [salu("s_add_u32", sT4, sBufR, QBUF), scmp("s_cmp_eq_u32", sT4, 3 * QBUF), salu("s_cselect_b32", sT4, 0, sT4)]
        gaps[51] += [salu("s_sub_u32", sDelta, sT4, sBufR)]
        gaps[52] += [salu("s_mov_b32", sBufR, sT4), valu("v_add_u32", vWx, sDelta, vWx)]
        gaps[53] += [valu("v_add_u32", vWy, sDelta, vWy), valu("v_add_u32", vXr, sDelta, vXr)]
        gaps[54] += [valu("v_add_u32", vXc, sDelta, vXc)]
        for k, ld in enumerate(a_loads(0) + a_loads(1)): gaps[60 + k].append(ld)
        for t in range(10): gaps[70 + t].insert(0, b_load(t >> 1, t & 1))
    else:
        for k in range(8): gaps[60 + k].append(k_load(0, k >> 2, k & 3))
    if mode == "loop":
        gaps[68] += [salu("s_add_u32", sQx, sQx, 128), salu("s_add_u32", sQw, sQw, 524288)]
        gaps[69] += [salu("s_add_u32", sBufD, sBufD, QBUF), scmp("s_cmp_eq_u32", sBufD, 3 * QBUF), salu("s_cselect_b32", sBufD, 0, sBufD)]
        gaps[79] += [salu("s_sub_u32", sCnt, sCnt, 1), scmp("s_cmp_lg_u32", sCnt, 0), branch("s_cbranch_scc1", "L_qloop")]
    ins = ([label("L_qloop")] if mode == "loop" else []) + pre
    for m, g in zip(M, gaps): ins += [m] + g
    return ins

def wot_dma(o):
    l = vLane; t0, t1 = vT[1], vT[2]
    ins = [salu("s_lshr_b32", sT0, S(2), 3), salu("s_lshl_b32", sT0, sT0, 2), salu("s_add_u32", sT0, sT0, sW), salu("s_lshl_b32", sT0, sT0, 15),
           salu("s_and_b32", sT1, S(2), 7), salu("s_lshl_b32", sT1, sT1, 7), salu("s_add_u32", sT0, sT0, sT1),
           valu("v_lshrrev_b32", t0, 3, l), valu("v_lshlrev_b32", t0, 10, t0), valu("v_and_b32", t1, 7, l), valu("v_lshl_add_u32", t0, t1, 4, t0)]
    for i in range(4):
        ins += [salu("s_add_u32", "m0", sW4k, 131072 + i * 1024), salu("s_add_u32", sT1, sT0, i * 8192), buf_dma(t0, srdWO, sT1, 0, o.fwo, tag=("WO", 0))]
    return ins

def wot_finish(o):
    l = vLane; t0, t1, t2 = vT[1], vT[2], vT[3]
    ins = [valu("v_lshrrev_b32", t0, 2, l), valu("v_lshlrev_b32", t0, 7, t0), valu("v_and_b32", t1, 3, l), valu("v_lshl_add_u32", t0, t1, 3, t0),
           salu("s_add_u32", sT0, sW4k, 131072), valu("v_add_u32", t0, sT0, t0),
           valu("v_lshlrev_b32", t2, 4, l),
           salu("s_and_b32", sT1, S(2), 7), salu("s_lshl_b32", sT1, sT1, 7), salu("s_lshr_b32", sT0, S(2), 3), salu("s_lshl_b32", sT0, sT0, 2),
           salu("s_add_u32", sT0, sT0, sW), salu("s_add_u32", sT0, sT0, sT1), salu("s_lshl_b32", sT0, sT0, 12),
           wait_vm(tags=[("WO", 0)])]
    dst = [A(224 + 4 * ct, 4) for ct in range(4)]
    for ct in range(4):
        for jh in range(2): ins += [ds_read("ds_read_b64_tr_b16", dst[ct][2 * jh:2 * jh + 2], t0, jh * 2048 + ct * 32)]
    for ct in range(4):
        ins += [wait_lgkm(dst[ct]), buf_store(dst[ct], t2, srdWT, sT0, ct * 1024, o.fst, tag=("WTST", 0))]
    return ins

def q_epilogue(o):
    ins = []
    for q in range(5):
        for s in range(4):
            X, Y = acc(q, 2 * s), acc(q, 2 * s + 1)
            for T in (X, Y):
                for h in range(2): ins += [valu("v_pk_mul_f32", T[2 * h:2 * h + 2], T[2 * h:2 * h + 2], sC)]
            ins += [valu("v_cvt_pk_bf16_f32", X[0], X[0], X[1]), valu("v_cvt_pk_bf16_f32", X[1], X[2], X[3]),
                    valu("v_cvt_pk_bf16_f32", X[2], Y[0], Y[1]), valu("v_cvt_pk_bf16_f32", X[3], Y[2], Y[3])]
    ins += [salu("s_mov_b64", "exec", sExecHi)]
    for q in range(5):
        for s in range(4):
            X = Qf(q, s)
            ins += [vswap("v_swap_b32", X[0], X[2]), vswap("v_swap_b32", X[1], X[3])]
    ins += [salu("s_mov_b64", "exec", -1)]
    return ins

TILES = [(kt, q) for kt in range(2) for q in range(5)] + [(kt, q) for kt in (2, 3) for q in range(4)]
def qk_list(n):
    out = []
    for j, (kt, q) in enumerate(TILES):
        for s in range(4): out.append(mfma(St(j), Kf(kt & 1, s), Qf(q, s), 0 if s == 0 else None))
    return out
def pv_list(n):
    out = []
    for dt in range(8):
        for q in range(4):
            for c in range(2): out.append(mfma(Of(q, dt), Vf(dt, c), Pf(n & 1, 2 * q + c)))
        out.append(mfma(Of(4, dt), Vf(dt, 0), Pf(n & 1, 8)))
    return out

class Tmpl:
    def __init__(self, o):
        self.o = o
        P = 144
        self.sh = [None] * P; self.post = [[] for _ in range(P)]; self.cap = [2 if t % 2 else 0 for t in range(P)]
        self.build()
    def shadow(self, fn, lo, hi, par, cost=0):
        for t in range(lo, hi + 1):
            if t % 2 == par and self.sh[t % 144] is None:
                self.sh[t % 144] = (fn, -(t // 144)); self.cap[t % 144] -= cost
                return t
        raise Exception(f"no shadow slot in {lo}..{hi}")
    def build(self):
        o = self.o
        valid = lambda st: 0 <= st <= 15
        tg = lambda kind, st: (lambda e: (kind, st + 2 * e.get("k", 0)))
        self.shadow(lambda n: wait_vm(tags=[tg("K", n + 1), tg("V", n)]) if n <= 15 else None, 70, 70, 0)
        self.shadow(lambda n: barrier() if n <= 15 else None, 72, 72, 0)
        dm = [("V", i) for i in range(4)] + [("K", i) for i in range(4)]
        pos = [75 + 18 * k for k in range(8)]
        for (kind, i), t in zip(dm, pos):
            v = (vDA if i < 2 else vDB) if kind == "K" else (vDA if i % 2 == 0 else vDB)
            d = 2 if kind == "V" else 4
            ok = lambda n, d=d: (1 <= n <= 14) or (n == 0)
            if i == 0:
                def m0f(n, kind=kind, ok=ok):
                    if not ok(n): return None
                    if kind == "K": return salu("s_add_u32", "m0", sRing, (n & 1) * 16384)
                    return salu("s_xor_b32", "m0", sRing, 65536 + 32768 + (n & 1) * 16384)
                self.shadow(m0f, t - 1, t - 1, 0)
            self.shadow(lambda n, kind=kind, i=i, v=v, d=d, ok=ok: buf_dma(v, srdK if kind == "K" else srdV, sKoff if kind == "K" else sVoff, i * 1024, o.fkv, tag=tg(kind, n + d)) if ok(n) else None, t, t + 4, 1, cost=2)
        self.shadow(lambda n: salu("s_add_u32", sVoff, sVoff, 16384) if 0 <= n <= 14 else None, 132, 140, 0)
        self.shadow(lambda n: salu("s_add_u32", sKoff, sKoff, 16384) if 0 <= n <= 14 else None, 144 + 62, 144 + 68, 0)
        self.shadow(lambda n: salu("s_xor_b32", sRing, sRing, 32768) if (0 <= n <= 14 and n & 1) else None, 144 + 62, 144 + 68, 0)
        for s in range(4): self.shadow(lambda n, s=s: k_load(n, 2, s) if valid(n) else None, 21, 35, 1, cost=1)
        for s in range(4): self.shadow(lambda n, s=s: k_load(n, 3, s) if valid(n) else None, 41, 51, 1, cost=1)
        for dt in range(4, 8):
            lo = 72 + 9 * (dt - 4) + 9
            for c in range(2):
                for jh in range(2): self.shadow(lambda n, dt=dt, c=c, jh=jh: v_load(n - 1, dt, c, jh) if valid(n - 1) else None, lo, lo + 22, 1, cost=1)
        for kt in range(2):
            for s in range(4): self.shadow(lambda n, s=s, kt=kt: k_load(n + 1, kt, s) if valid(n + 1) else None, 115 + 8 * kt if kt else 73, 141, 1, cost=1)
        los = [1, 9, 29, 53]
        for dt in range(4):
            for c in range(2):
                for jh in range(2): self.shadow(lambda n, dt=dt, c=c, jh=jh: v_load(n - 1, dt, c, jh) if valid(n - 1) else None, los[dt], 69, 1, cost=1)
        for kt, t in ((0, 142), (1, 18), (2, 38), (3, 54)):
            d = 1 if kt == 0 else 0
            self.shadow(lambda n, kt=kt, d=d: wait_lgkm(*[Kf(kt & 1, s) for s in range(4)]) if valid(n + d) else None, t, t, 0)
        for dt in range(8):
            t = 72 + 9 * dt - 1
            t -= t % 2
            if dt == 0: t = 68
            self.shadow(lambda n, dt=dt: wait_lgkm(Vf(dt, 0), Vf(dt, 1)) if valid(n - 1) else None, t - 2 if self.sh[t] else t, t, 0)
        extra = {}
        extra[56] = [lambda n, r=r: valu("v_xor_b32", r, 32768, r) if (n & 1 and n <= 14) else None for r in vKa]
        extra[136] = [lambda n, r=r: valu("v_xor_b32", r, 32768, r) if (n % 2 == 0 and 2 <= n <= 15) else None for r in vVa[0]]
        extra[138] = [lambda n, r=r: valu("v_xor_b32", r, 32768, r) if (n % 2 == 0 and 2 <= n <= 15) else None for r in vVa[1]]
        lag = o.lag
        ready = []
        k = 0
        nextra = 0
        for t in range(lag, lag + 144 + 12):
            tt = t % 144; dl = -(t // 144)
            if tt in extra and t < lag + 144:
                for f in extra[tt]: self.post[tt].append((f, 0 if t < 144 else 0))
            if t % 2 == 0 and k < 72:
                j, r = k // 4, k % 4
                kt, q = TILES[j]
                self.post[tt].append((lambda n, j=j, r=r: valu("v_exp_f32", St(j)[r], St(j)[r]) if valid(n) else None, dl))
                newops = [(lambda n, j=j, r=r, q=q: valu("v_add_f32", vL[q], St(j)[r], vL[q]) if valid(n) else None)]
                if r & 1:
                    f = 2 * q + (kt >> 1) if q < 4 else 8
                    newops.append(lambda n, j=j, r=r, f=f, kt=kt: valu("v_cvt_pk_bf16_f32", Pf(n & 1, f)[2 * (kt & 1) + (r >> 1)], St(j)[r - 1], St(j)[r]) if valid(n) else None)
                k += 1
                if len(ready) >= o.backlog:
                    self.post[tt].append((ready.pop(0), dl)); nextra += 1
                ready += newops
            elif t % 2 == 1 or k >= 72:
                c = self.cap[tt] if t < lag + 144 else 0
                if k >= 72 and t >= lag + 143: c = max(c, 1)
                for _ in range(max(c, 0)):
                    if ready: self.post[tt].append((ready.pop(0), dl))
                if t < lag + 144: self.cap[tt] = 0
        assert not ready, len(ready)
    def emit(self, n0, t0, n1, t1):
        ins = []
        n, t = n0, t0
        cache = {}
        while (n, t) != (n1, t1):
            if n not in cache: cache[n] = (qk_list(n), pv_list(n - 1))
            if t < 72:
                if 0 <= n <= 15: ins.append(cache[n][0][t])
            elif 0 <= n - 1 <= 15: ins.append(cache[n][1][t - 72])
            if self.sh[t]:
                x = self.sh[t][0](n + self.sh[t][1])
                if x: ins.append(x)
            for f, dl in self.post[t]:
                x = f(n + dl)
                if x: ins.append(x)
            t += 1
            if t == 144: t = 0; n += 1
        return ins

def o_epilogue(o):
    ins = []
    l = vLane; t0, t1, t2, t3 = vT[1], vT[2], vT[3], vT[4]
    ins += [valu("v_lshlrev_b32", t0, 4, l), salu("s_lshl_b32", sT0, sW, 13), salu("s_add_u32", sT0, sT0, 131072), valu("v_add_u32", t1, sT0, t0),
            valu("v_xor_b32", t2, 16384, t1),
            salu("s_lshl_b32", sT0, sW, 8), salu("s_add_u32", sT0, sT0, 49152), valu("v_lshl_add_u32", t3, l, 2, sT0)]
    for dt in range(8): ins += [ds_write("ds_write_b128", t1, Of(4, dt), dt * 1024)]
    ins += [ds_write("ds_write_b32", t3, vL[4]), valu("v_xor_b32", t3, 512, t3), Wait(lgkm=0), barrier()]
    part = [St(dt) for dt in range(8)]
    for dt in range(8): ins += [ds_read("ds_read_b128", part[dt], t2, dt * 1024)]
    ins += [ds_read("ds_read_b32", vT[5], t3)]
    salu_q = lambda q: [salu("s_mov_b32", sT1, q * 131072)]
    ins += [salu("s_lshl_b32", sT0, sW, 19), valu("v_add_u32", vT[6], sT0, t0),
            salu("s_and_b32", sT0, sW, 1), salu("s_add_u32", sT0, sT0, 16), salu("s_lshl_b32", sT0, sT0, 17), valu("v_add_u32", vT[7], sT0, t0)]
    tmp = [Pf(0, f) for f in range(9)] + [Pf(1, f) for f in range(9)]
    order = [0, 1, 2, 3, 4]
    for q in order:
        if q == 4: ins += [wait_lgkm(vT[5]), valu("v_add_f32", vL[4], vT[5], vL[4])]
        L = vL[q]
        for op in ("v_permlane32_swap_b32", "v_permlane16_swap_b32"):
            ins += [valu("v_mov_b32", t1, L), vswap(op, L, t1), valu("v_add_f32", L, L, t1)]
        ins += [valu("v_rcp_f32", t1, L)]
        ins += [salu("s_mov_b32", sT1, q * 131072 if q < 4 else 0)]
        for s in range(4):
            X, Y = tmp[(8 * q + 2 * s) % 18], tmp[(8 * q + 2 * s + 1) % 18]
            for T, dt in ((X, 2 * s), (Y, 2 * s + 1)):
                for r in range(4): ins += [valu("v_accvgpr_read_b32", T[r], Of(q, dt)[r])]
                if q == 4:
                    for r in range(4): ins += [valu("v_add_f32", T[r], T[r], part[dt][r])]
                for h in range(2): ins += [valu("v_pk_mul_f32", T[2 * h:2 * h + 2], T[2 * h:2 * h + 2], Reg("v", t1.lo, 2), extra=" op_sel_hi:[1,0]")]
            ins += [valu("v_cvt_pk_bf16_f32", X[0], X[0], X[1]), valu("v_cvt_pk_bf16_f32", X[1], X[2], X[3]),
                    valu("v_cvt_pk_bf16_f32", X[2], Y[0], Y[1]), valu("v_cvt_pk_bf16_f32", X[3], Y[2], Y[3]),
                    buf_store(X, vT[6] if q < 4 else vT[7], srdO, sT1, s * 1024, o.fst, tag=("OST", 0))]
    return ins

def kernel_A(o):
    p = Prog("A")
    p.seg(head_A(o)); p.seg(startup_A(o))
    p.seg(q_stage(o, "loop"), envs=[{"s": s} for s in range(6)], fix=False)
    p.seg(q_stage(o, "s6"), envs=[{"s": 6}], fix=False)
    p.seg(q_stage(o, "s7") + wot_dma(o), envs=[{"s": 7}])
    p.seg(stamp(o, 2) + q_epilogue(o))
    p.seg([salu("s_mov_b32", sKoff, 4 * 16384), salu("s_mov_b32", sVoff, 2 * 16384), salu("s_mov_b32", sRing, sW4k), salu("s_mov_b32", sCnt, 7),
           wait_lgkm(*[Kf(0, s) for s in range(4)])] + stamp(o, 3))
    T = Tmpl(o)
    p.seg(T.emit(0, 0, 0, 100) + wot_finish(o) + T.emit(0, 100, 1, 70))
    body = [label("L_aloop")] + T.emit(1, 70, 3, 70)
    body += [salu("s_sub_u32", sCnt, sCnt, 1), scmp("s_cmp_lg_u32", sCnt, 0), branch("s_cbranch_scc1", "L_aloop")]
    p.seg(stamp(o, 4))
    p.seg(body, envs=[{"k": k} for k in range(7)], fix=False)
    p.seg(stamp(o, 5))
    p.seg(T.emit(15, 70, 17, 0))
    p.seg(stamp(o, 6) + o_epilogue(o) + stamp(o, 7) + stamp_store(o, 8) + [label("L_exitA"), raw("s_endpgm")])
    p.finalize()
    c, nm = est_cycles(body)
    print(f"attention loop body: est {c} cycles for {nm} mfma -> {c/nm*2:.2f} cyc/slot, {len(body)} instrs")
    return p

def kernel_B(o):
    p = Prog("B")
    sMj, sNj = S(66), S(67)
    l = vLane; t0, t1, t2 = vT[1], vT[2], vT[3]
    vA, vB, vBc = V(1), V(2), V(3)
    ins = [scmp("s_cmp_ge_u32", S(2), 256), branch("s_cbranch_scc1", "L_exitB"),
           smem(f"s_load_dwordx16 {sARG}, s[0:1], 0", [sARG])]
    if o.stamps: ins += [smem(f"s_memrealtime {sStamp[0:2]}", [sStamp[0:2]])]
    ins += [valu("v_lshrrev_b32", t0, 6, V(0)), valu("v_and_b32", vLane, 63, V(0)), rfl(sW, t0),
            salu("s_and_b32", sB, S(2), 7), salu("s_lshr_b32", sMj, S(2), 3), salu("s_and_b32", sMj, sMj, 3), salu("s_lshr_b32", sNj, S(2), 5),
            valu("v_lshlrev_b32", t0, 4, l),
            salu("s_lshl_b32", sT0, sW, 17), valu("v_add_u32", vA, sT0, t0),
            salu("s_lshl_b32", sT0, sW, 15), salu("s_lshl_b32", sT1, sMj, 19), salu("s_add_u32", sT1, sT1, sT0), valu("v_add_u32", vB, sT1, t0),
            valu("v_and_b32", t1, 0x37, l), salu("s_and_b32", sT1, sMj, 1), salu("s_lshl_b32", sT1, sT1, 3), valu("v_or_b32", t1, sT1, t1), valu("v_lshlrev_b32", t1, 4, t1),
            salu("s_lshr_b32", sT1, sMj, 1), salu("s_add_u32", sT1, sT1, 16), salu("s_lshl_b32", sT1, sT1, 17), salu("s_add_u32", sT1, sT1, sT0), valu("v_add_u32", vBc, sT1, t1),
            Wait(lgkm=0),
            salu("s_mul_i32", sT0, sB, 18 * 131072), salu("s_add_u32", sT0, sT0, WS_O)] + srd(srdO, sARG[14], sARG[15], sT0, 18 * 131072)
    ins += [salu("s_lshl_b32", sT0, sNj, 19), salu("s_add_u32", sT0, sT0, WS_WOT)] + srd(srdWT, sARG[14], sARG[15], sT0, 524288)
    sRT = [S(96 + i) for i in range(4)]; sKA = S(100); sKC = S(101)
    D = 3
    def Af(pr, k, ct): return A(4 * (18 * pr + 4 * k + ct), 4)
    def Bf(pr, k, rt): return A(4 * (18 * pr + 8 + 5 * k + rt), 4)
    def Cf(ct, rt): return G(5 * ct + rt)
    def loads(pr):
        out = []
        for k in range(2):
            for ct in range(4):
                off = (4 * k + ct) * 1024
                out.append(buf_load(Af(pr, k, ct), vA, srdWT, sKA if off < 4096 else sKC, off % 4096, o.fld))
            for rt in range(5): out.append(buf_load(Bf(pr, k, rt), vB if rt < 4 else vBc, srdO, sRT[rt % 4] if rt < 4 else sRT[0], k * 1024, o.fld))
        return out
    def adv(): return [salu("s_add_u32", r, r, 2048) for r in sRT] + [salu("s_add_u32", sKA, sKA, 8192), salu("s_add_u32", sKC, sKC, 8192)]
    ins += [salu("s_mov_b32", sRT[i], i * 131072) for i in range(4)] + [salu("s_mov_b32", sKA, 0), salu("s_mov_b32", sKC, 4096)]
    for pr in range(D): ins += loads(pr) + adv()
    for ct in range(4):
        for rt in range(5):
            for r in range(4): ins += [valu("v_mov_b32", Cf(ct, rt)[r], 0)]
    p.seg(ins + stamp(o, 1))
    def pair(pr, ld):
        M = [mfma(Cf(ct, rt), Af(pr, k, ct), Bf(pr, k, rt)) for ct in range(4) for rt in range(5) for k in range(2)]
        out = [wait_vm(regs=[Af(pr, k, c) for k in range(2) for c in range(4)] + [Bf(pr, k, r) for k in range(2) for r in range(5)])]
        out += M
        if ld: out += loads(pr) + adv()
        return out
    body = [label("L_bloop")] + pair(0, True) + pair(1, True) + pair(2, True) + [salu("s_sub_u32", sCnt, sCnt, 1), scmp("s_cmp_lg_u32", sCnt, 0), branch("s_cbranch_scc1", "L_bloop")]
    p.seg([salu("s_mov_b32", sCnt, 4)])
    p.seg(body, envs=[{} for _ in range(4)])
    p.seg(pair(0, True) + pair(1, False) + pair(2, False) + pair(0, False) + stamp(o, 2))
    ins = [valu("v_lshlrev_b32", t0, 4, l), salu("s_mul_i32", sT0, sW, 20480), valu("v_add_u32", t1, sT0, t0)]
    for ct in range(4):
        for rt in range(5): ins += [ds_write("ds_write_b128", t1, Cf(ct, rt), (5 * ct + rt) * 1024)]
    ins += [Wait(lgkm=0), barrier()]
    ins += [valu("v_bfe_u32", t0, l, 1, 2), valu("v_mul_u32_u24", t0, 5120, t0), valu("v_and_b32", t1, 1, l), valu("v_lshl_add_u32", t0, t1, 9, t0),
            valu("v_lshrrev_b32", t2, 3, l), valu("v_lshl_add_u32", t0, t2, 4, t0),
            salu("s_lshl_b32", sT0, sW, 10), valu("v_add_u32", V(4), sT0, t0)]
    ins += [salu("s_mul_i32", sT0, sB, 294912), salu("s_lshl_b32", sT1, sNj, 7), salu("s_add_u32", sT0, sT0, sT1), salu("s_sub_u32", sT1, 8 * 294912, sT0)] + srd(srdOUT, sARG[10], sARG[11], sT0, sT1)
    ins += [valu("v_and_b32", t1, 7, l), valu("v_lshlrev_b32", t1, 4, t1), valu("v_lshl_add_u32", t1, t2, 10, t1),
            salu("s_lshl_b32", sT0, sMj, 16), salu("s_lshl_b32", sT1, sW, 14), salu("s_add_u32", sT0, sT0, sT1),
            salu("s_lshl_b32", sT1, sMj, 13), salu("s_add_u32", sT1, sT1, 256 * 1024)]
    def task(addr, off, soff, base):
        out = []
        regs = [[G(base + 2 * wv + h) for h in range(2)] for wv in range(4)]
        for wv in range(4):
            for h in range(2):
                o_ = wv * 20480 + off + h * 256
                out.append(ds_read("ds_read_b128", regs[wv][h], addr, o_))
        for wv in range(1, 4):
            out.append(wait_lgkm(regs[wv][0], regs[wv][1], regs[0][0], regs[0][1]))
            for h in range(2):
                for r in range(4): out.append(valu("v_add_f32", regs[0][h][r], regs[0][h][r], regs[wv][h][r]))
        X, Y = regs[0]
        out += [valu("v_cvt_pk_bf16_f32", X[0], X[0], X[1]), valu("v_cvt_pk_bf16_f32", X[1], X[2], X[3]),
                valu("v_cvt_pk_bf16_f32", X[2], Y[0], Y[1]), valu("v_cvt_pk_bf16_f32", X[3], Y[2], Y[3]),
                buf_store(X, t1, srdOUT, soff, 0)]
        return out
    ins += task(V(4), 0, sT0, 0)
    ins += [salu("s_add_u32", sT2, sT0, 8192)] + task(V(4), 128, sT2, 8)
    ins += [scmp("s_cmp_lg_u32", sW, 0), branch("s_cbranch_scc1", "L_doneB")]
    ins += [valu("v_add_u32", t0, 4096, t0)] + task(t0, 0, sT1, 16)
    ins += [label("L_doneB")] + stamp(o, 3) + stamp_store(o, 4) + [label("L_exitB"), raw("s_endpgm")]
    p.seg(ins)
    p.finalize()
    return p

KD = """.section .rodata,"a"
.p2align 6
.amdhsa_kernel {name}
  .amdhsa_next_free_vgpr 512
  .amdhsa_next_free_sgpr 102
  .amdhsa_accum_offset 256
  .amdhsa_group_segment_fixed_size 0
  .amdhsa_kernarg_size 64
  .amdhsa_user_sgpr_count 2
  .amdhsa_user_sgpr_kernarg_segment_ptr 1
  .amdhsa_system_sgpr_workgroup_id_x 1
.end_amdhsa_kernel
"""
def build(o):
    o.dbg_off = 0
    a = kernel_A(o)
    o.dbg_off = 65536
    b = kernel_B(o)
    s = "; generated by gen/gen.py\n"
    s += "; @launch kernel=attn_kernel grid=(256,1,1) block=(256,1,1) lds=163840\n"
    s += "; @launch kernel=oproj_kernel grid=(256,1,1) block=(256,1,1) lds=81920\n"
    s += '.amdgcn_target "amdgcn-amd-amdhsa--gfx950"\n.text\n'
    for nm, p in (("attn_kernel", a), ("oproj_kernel", b)):
        s += f".globl {nm}\n.p2align 8\n.type {nm},@function\n{nm}:\n" + p.text() + "\n"
    for nm in ("attn_kernel", "oproj_kernel"): s += KD.format(name=nm)
    return s

def opts(argv=None):
    ap = argparse.ArgumentParser()
    ap.add_argument("-o", default="cdna_kernels/" + NAME + ".s")
    ap.add_argument("--map", default="4x8")
    ap.add_argument("--fx", default=""); ap.add_argument("--fw", default=""); ap.add_argument("--fkv", default="nt")
    ap.add_argument("--fwo", default=""); ap.add_argument("--fst", default=""); ap.add_argument("--fld", default="")
    ap.add_argument("--lag", type=int, default=8); ap.add_argument("--backlog", type=int, default=2)
    ap.add_argument("--stamps", type=int, default=0)
    return ap.parse_args(argv)

if __name__ == "__main__":
    o = opts()
    s = build(o)
    open(o.o, "w").write(s)
    print("wrote", o.o, len(s), "bytes")
```

```python
import re

def R(kind, lo, n=1):
    return [f"{kind}{lo+i}" for i in range(n)]

def rng(kind, lo, n):
    return f"{kind}{lo}" if n == 1 else f"{kind}[{lo}:{lo+n-1}]"

class Reg:
    def __init__(self, kind, lo, n=1):
        self.kind, self.lo, self.n = kind, lo, n
    def __str__(self): return rng(self.kind, self.lo, self.n)
    def regs(self): return R(self.kind, self.lo, self.n)
    def __getitem__(self, i):
        if isinstance(i, slice):
            a = i.start or 0; b = i.stop if i.stop is not None else self.n
            assert 0 <= a < b <= self.n
            return Reg(self.kind, self.lo + a, b - a)
        assert 0 <= i < self.n
        return Reg(self.kind, self.lo + i, 1)
def V(lo, n=1): return Reg("v", lo, n)
def A(lo, n=1): return Reg("a", lo, n)
def S(lo, n=1): return Reg("s", lo, n)

def regs_of(x):
    if isinstance(x, Reg): return x.regs()
    if isinstance(x, str) and x in ("vcc", "exec", "m0", "scc"): return [x]
    return []

class I:
    def __init__(self, text, kind, rd=(), wr=(), tag=None, cost=None, **kw):
        self.text, self.kind = text, kind
        self.rd = [r for x in rd for r in regs_of(x)]
        self.wr = [r for x in wr for r in regs_of(x)]
        self.tag = tag
        self.kw = kw
    def __repr__(self): return self.text

def fmt(x):
    if isinstance(x, float):
        return repr(x)
    if isinstance(x, int):
        return str(x) if -16 <= x <= 64 else hex(x & 0xffffffff)
    return str(x)

def mfma(d, a, b, c=None):
    c = d if c is None else c
    return I(f"v_mfma_f32_16x16x32_bf16 {d}, {a}, {b}, {fmt(c)}", "mfma", rd=[a, b, c], wr=[d], srcc=regs_of(c), ab=regs_of(a)+regs_of(b))
def valu(op, d, *src, extra="", rdd=False, wr2=()):
    kind = "trans" if op.split("_")[1] in ("exp", "rcp", "log", "rsq", "sqrt") else "valu"
    rd = list(src) + ([d] if rdd else []) + ["exec"]
    return I(f"{op} {d}, " + ", ".join(fmt(s) for s in src) + extra, kind, rd=rd, wr=[d] + list(wr2), op=op)
def vcmp(op, d, a, b):
    return I(f"{op} {d}, {fmt(a)}, {fmt(b)}", "valu", rd=[a, b, "exec"], wr=[d], op=op)
def cndmask(d, f, t, m="vcc"):
    return I(f"v_cndmask_b32 {d}, {fmt(f)}, {fmt(t)}, {m}", "valu", rd=[f, t, m, "exec"], wr=[d], op="v_cndmask_b32", maskrd=regs_of(m))
def vswap(op, a, b):
    return I(f"{op} {a}, {b}", "valu", rd=[a, b, "exec"], wr=[a, b], op=op)
def rfl(d, s):
    return I(f"v_readfirstlane_b32 {d}, {s}", "valu", rd=[s, "exec"], wr=[d], op="v_readfirstlane_b32")
def salu(op, d, *src, scc=True):
    wr = [d] + (["scc"] if scc and op not in ("s_mov_b32", "s_mov_b64", "s_mul_i32", "s_cselect_b32", "s_movk_i32") else [])
    rd = list(src) + (["scc"] if op in ("s_addc_u32", "s_subb_u32", "s_cselect_b32", "s_cselect_b64") else [])
    return I(f"{op} {d}, " + ", ".join(fmt(s) for s in src), "salu", rd=rd, wr=wr, op=op)
def scmp(op, a, b):
    return I(f"{op} {fmt(a)}, {fmt(b)}", "salu", rd=[a, b], wr=["scc"], op=op)
def branch(op, label):
    return I(f"{op} {label}", "branch", rd=["scc"] if "scc" in op else (["vcc"] if "vcc" in op else []), op=op, target=label)
def label(name): return I(f"{name}:", "label", name=name)
def ds_read(op, d, addr, off=0):
    assert 0 <= off < 65536, off
    return I(f"{op} {d}, {addr}" + (f" offset:{off}" if off else ""), "ds_r", rd=[addr, "exec"], wr=[d])
def ds_write(op, addr, data, off=0):
    assert 0 <= off < 65536, off
    return I(f"{op} {addr}, {data}" + (f" offset:{off}" if off else ""), "ds_w", rd=[addr, data, "exec"])
def buf_load(d, voff, srd, soff=0, off=0, flags="", op="buffer_load_dwordx4", tag=None):
    assert 0 <= off < 4096
    return I(f"{op} {d}, {voff}, {srd}, {fmt(soff)} offen" + (f" offset:{off}" if off else "") + (" " + flags if flags else ""), "vm_ld", rd=[voff, srd, soff, "exec"], wr=[d], tag=tag)
def buf_dma(voff, srd, soff=0, off=0, flags="", tag=None):
    assert 0 <= off < 4096
    return I(f"buffer_load_dwordx4 {voff}, {srd}, {fmt(soff)} offen" + (f" offset:{off}" if off else "") + (" " + flags if flags else "") + " lds", "vm_dma", rd=[voff, srd, soff, "m0", "exec"], tag=tag)
def buf_store(data, voff, srd, soff=0, off=0, flags="", op="buffer_store_dwordx4", tag=None):
    assert 0 <= off < 4096
    return I(f"{op} {data}, {voff}, {srd}, {fmt(soff)} offen" + (f" offset:{off}" if off else "") + (" " + flags if flags else ""), "vm_st", rd=[data, voff, srd, soff, "exec"], tag=tag, data=regs_of(data))
def smem(text, wr, rd=()):
    return I(text, "smem", rd=rd, wr=wr)
def nop(n=0): return I(f"s_nop {n}", "nop", n=n)
def barrier(): return I("s_barrier", "barrier")
def raw(text, kind="salu", rd=(), wr=()): return I(text, kind, rd=rd, wr=wr)
class Wait(I):
    def __init__(self, vm=None, lgkm=None, regs=(), tags=()):
        super().__init__("s_waitcnt", "wait")
        self.vm, self.lgkm = vm, lgkm
        self.regs = [r for x in regs for r in regs_of(x)]
        self.tags = tags
        self.rvm = vm if isinstance(vm, int) else None
        self.rlg = lgkm if isinstance(lgkm, int) else None
    def render(self):
        p = []
        if self.vm is not None:
            p.append(f"vmcnt({min(63, self.rvm if self.rvm is not None else 63)})")
        if self.lgkm is not None:
            p.append(f"lgkmcnt({min(15, self.rlg if self.rlg is not None else 15)})")
        return "s_waitcnt " + " ".join(p)

def wait_lgkm(*regs): return Wait(lgkm="auto", regs=regs)
def wait_vm(regs=(), tags=()): return Wait(vm="auto", regs=regs, tags=tags)

def render(ins):
    out = []
    for i in ins:
        if i.kw.get("virtual"): continue
        t = i.render() if isinstance(i, Wait) else i.text
        out.append(t if i.kind == "label" else "  " + t)
    return "\n".join(out)

def ev(x, env):
    return x(env) if callable(x) else x

def resolve_waits(trace):
    for _ in range(2):
        lg, vm = [], []
        for ins, env in trace:
            k = ins.kind
            if k in ("ds_r", "ds_w"): lg.append((ins.wr, None))
            elif k == "smem": lg.append((ins.wr, "smem"))
            elif k in ("vm_ld", "vm_dma", "vm_st"): vm.append((ins.wr, ev(ins.tag, env)))
            elif k == "wait":
                if ins.lgkm == "auto":
                    idx = [j for j, (r, t) in enumerate(lg) if set(r) & set(ins.regs)]
                    if idx:
                        n = len(lg) - 1 - max(idx)
                        if any(t == "smem" for r, t in lg): n = 0
                        ins.rlg = n if ins.rlg is None else min(ins.rlg, n)
                if ins.vm == "auto":
                    tg = [ev(t, env) for t in ins.tags]
                    idx = [j for j, (r, t) in enumerate(vm) if (set(r) & set(ins.regs)) or (t is not None and t in tg)]
                    if idx:
                        n = len(vm) - 1 - max(idx)
                        ins.rvm = n if ins.rvm is None else min(ins.rvm, n)
                if ins.lgkm is not None:
                    n = min(15, ins.rlg if ins.rlg is not None else 15)
                    if n == 0 or not any(t == "smem" for r, t in lg):
                        lg = lg[len(lg) - n:] if n < len(lg) else lg
                if ins.vm is not None:
                    n = min(63, ins.rvm if ins.rvm is not None else 63)
                    vm = vm[len(vm) - n:] if n < len(vm) else vm

NOVMCHECK = [False]
def check(trace, name=""):
    probs = []
    lg, vm = [], []
    hist = []
    pos = 0
    def need(cond_fn, dist, what, ins):
        for h, p in reversed(hist[-40:]):
            if pos - p - 1 >= dist and h.kind != "nop":
                if pos - p - 1 >= 24: break
            if cond_fn(h) and (pos - p - 1) < dist:
                probs.append((f"{name}: hazard {what}: '{h.text}' -> '{ins.text}' dist {pos-p-1} < {dist}", ins, dist - (pos-p-1)))
    for ins, env in trace:
        k = ins.kind
        if k == "label": continue
        rd, wr = set(ins.rd), set(ins.wr)
        for q, nm in ((lg, "lgkm"), (vm, "vm")):
            for r, t in q:
                if set(r) & (rd | wr):
                    if k in ("ds_r",) and nm == "lgkm" and not (set(r) & rd): continue
                    if k == "vm_ld" and nm == "vm" and not (set(r) & rd): continue
                    probs.append((f"{name}: missing {nm} wait for {sorted(set(r) & (rd|wr))[:2]} at '{ins.text}'", ins, None))
        vr = {r for r in rd if r[0] in "va" and r != "vcc"}
        vw = {r for r in wr if r[0] in "va" and r != "vcc"}
        isv = lambda h: h.kind in ("valu", "trans")
        if k == "mfma":
            need(lambda h: isv(h) and set(h.wr) & vr, 2, "valu->mfma", ins)
            need(lambda h: h.kind == "mfma" and set(h.wr) & set(ins.kw["ab"]), 8, "mfma->mfma AB", ins)
            need(lambda h: h.kind == "mfma" and set(h.wr) & set(ins.kw["srcc"]) and set(h.wr) != set(ins.kw["srcc"]), 6, "mfma->mfma C partial", ins)
            need(lambda h: isv(h) and "exec" in h.wr, 4, "exec->mfma", ins)
        if k in ("valu", "trans"):
            need(lambda h: h.kind == "mfma" and set(h.wr) & (vr | vw), 8, "mfma->valu", ins)
            need(lambda h: h.kind == "mfma" and set(h.kw["srcc"]) & vw, 3, "mfma srcC WAR", ins)
            if k == "valu": need(lambda h: h.kind == "trans" and set(h.wr) & vr, 1, "trans->valu", ins)
            need(lambda h: h.kind == "vm_st" and set(h.kw.get("data", [])) & vw, 2, "store data WAR", ins)
            sr = {r for r in rd if r[0] == "s" and r != "scc"} | set(ins.kw.get("maskrd", []))
            need(lambda h: isv(h) and set(h.wr) & sr, 2, "valu sgpr->valu", ins)
            op = ins.kw.get("op", "")
            if "permlane" in op: need(lambda h: isv(h) and set(h.wr) & vr, 2, "valu->permlane", ins)
            if "readfirstlane" in op or "readlane" in op: need(lambda h: isv(h) and set(h.wr) & vr, 1, "valu->readlane", ins)
        if k in ("ds_r", "ds_w", "vm_ld", "vm_dma", "vm_st"):
            need(lambda h: h.kind == "mfma" and set(h.wr) & (vr | vw), 8, "mfma->mem", ins)
        if k in ("ds_r", "vm_ld"):
            need(lambda h: h.kind == "vm_st" and set(h.kw.get("data", [])) & vw, 1, "store data WAR", ins)
        if k in ("vm_ld", "vm_dma", "vm_st"):
            sr = {r for r in rd if r[0] == "s"}
            need(lambda h: isv(h) and set(h.wr) & sr, 5, "valu sgpr->vmem", ins)
        if k == "vm_dma":
            need(lambda h: h.kind == "salu" and "m0" in h.wr, 1, "m0->dma", ins)
        if k == "salu" or k == "branch":
            need(lambda h: isv(h) and set(h.wr) & {r for r in rd if r[0] == "s" or r == "vcc"}, 1, "valu sgpr->salu(pad)", ins)
        if k in ("ds_r", "ds_w"): lg.append((ins.wr, None))
        elif k == "smem": lg.append((ins.wr, "smem"))
        elif k in ("vm_ld", "vm_dma", "vm_st"): vm.append((ins.wr, ev(ins.tag, env)))
        elif k == "wait":
            if ins.lgkm is not None:
                n = min(15, ins.rlg if ins.rlg is not None else 15)
                if n == 0 or not any(t == "smem" for r, t in lg):
                    lg = lg[len(lg) - n:] if n < len(lg) else lg
            if ins.vm is not None:
                n = min(63, ins.rvm if ins.rvm is not None else 63)
                vm = vm[len(vm) - n:] if n < len(vm) else vm
                tg = [ev(t, env) for t in ins.tags]
                for r, t in vm:
                    if t is not None and t in tg: probs.append((f"{name}: vm tag {t} not covered", ins, None))
        if len(vm) > 63 and not NOVMCHECK[0]: probs.append((f"{name}: vmcnt overflow at '{ins.text}'", ins, None))
        hist.append((ins, pos))
        pos += (ins.kw["n"] + 1) if k == "nop" else 1
    return probs

def est_cycles(ins):
    t = 0; prev = None; mf_ready = 0; n_m = 0
    for i in ins:
        k = i.kind
        if k == "label": continue
        sh = prev is not None and prev.kind == "mfma"
        if k == "mfma":
            t = max(t, mf_ready - 4); mf_ready = max(t, mf_ready) + 16; t += 4; n_m += 1
        elif k in ("valu", "trans"):
            t += (4 if sh else 0) + (8 if k == "trans" else 4)
        elif k in ("ds_r", "ds_w"): t += 8 if sh else 12
        elif k.startswith("vm"): t += 20 if sh else 24
        elif k == "nop": t += 4 * (i.kw["n"] + 1)
        elif k == "barrier": t += 50
        else: t += 4
        prev = i
    return t, n_m


class Prog:
    def __init__(self, name):
        self.name = name; self.segs = []
    def seg(self, ins, envs=None, fix=True):
        self.segs.append([list(ins), envs or [{}], fix]); return self.segs[-1][0]
    def trace(self):
        t = []
        for ins, envs, _ in self.segs:
            for e in envs: t += [(i, e) for i in ins if "cond" not in i.kw or i.kw["cond"](e)]
        return t
    def finalize(self, verbose=True):
        nfix = 0
        for ins, envs, _ in self.segs:
            if len(envs) > 1:
                assert ins[-1].kind == "branch" and ins[0].kind == "label" and ins[-1].kw["target"] == ins[0].kw["name"]
                cmpi = [i for i in ins if "scc" in i.wr][-1]
                assert len([i for i in ins if i.kind == "barrier" and "cond" in i.kw]) == 0
                assert cmpi.kw.get("op") == "s_cmp_lg_u32", cmpi
                cnt = cmpi.rd[0]
                w = [i for i in ins if cnt in i.wr]
                assert len(w) == 1 and w[0].text.startswith(f"s_sub_u32 {cnt}, {cnt}, 1"), (cnt, w)
                init = None
                for ins2, e2, _ in self.segs:
                    if ins2 is ins: break
                    for i in ins2:
                        if cnt in i.wr: init = i
                assert init.text == f"s_mov_b32 {cnt}, {len(envs)}", (init, len(envs))
        for it in range(2000):
            tr = self.trace()
            for i, _ in tr:
                if isinstance(i, Wait):
                    if i.vm == "auto": i.rvm = None
                    if i.lgkm == "auto": i.rlg = None
            resolve_waits(tr)
            probs = check(tr, self.name)
            fixable = [p for p in probs if p[2] is not None]
            if not fixable: break
            done = set()
            progress = False
            for msg, ins, d in fixable:
                if id(ins) in done: continue
                for seg, envs, fix in self.segs:
                    for j, x in enumerate(seg):
                        if x is ins:
                            d = max(p[2] for p in fixable if p[1] is ins)
                            if not fix and verbose: print("NOTE fixing hazard in tuned segment:", msg)
                            seg.insert(j, nop(d - 1)); nfix += 1; progress = True
                            break
                done.add(id(ins))
                break
            if not progress: break
        rest = [p[0] for p in probs]
        if verbose: print(f"{self.name}: inserted {nfix} nops; remaining problems: {len(rest)}")
        for m in rest[:40]: print("   PROBLEM", m)
        assert not rest
    def text(self):
        return "\n".join(render(ins) for ins, _, _ in self.segs)

def atomic_add(data, voff, srd_, soff=0, off=0, flags="sc1", tag=None):
    return I(f"buffer_atomic_add {data}, {voff}, {srd_}, {fmt(soff)} offen" + (f" offset:{off}" if off else "") + (" " + flags if flags else ""), "vm_st", rd=[data, voff, srd_, soff, "exec"], tag=tag, data=[])
def with_cond(ins, cond):
    for i in ins: i.kw["cond"] = cond
    return ins
```

```python
import sys, math, argparse
from asmlib import *

NAME = "standalone__mha_block_cached__near_ridge"
WS_O = 0
WS_WOT = 0x1400000
WS_DBG = 0x2000000
WS_FLG = 0x1900000
QBUF = 53248
SCALE = math.log2(math.e) / math.sqrt(128.0)
import struct
def f2u(x): return struct.unpack("<I", struct.pack("<f", x))[0]

sW = S(3)
srdX, srdWQ, srdK, srdV, srdO, srdWO, srdWT, srdOUT, srdDBG = [S(4 + 4 * i, 4) for i in range(9)]
sB, sH, sT0, sT1, sT2, sT3, sT4, sT5 = [S(40 + i) for i in range(8)]
sARG = S(48, 16)
sC = S(64, 2)
sQx, sQw, sBufD, sBufR, sDelta, sCnt = [S(66 + i) for i in range(6)]
sKoff, sVoff, sRing, sW4k = [S(72 + i) for i in range(4)]
sExecHi = S(76, 2)
sStamp = S(80, 16); sTm = S(78, 2)
vKa = [V(1), V(2)]
vVa = [[V(3), V(4)], [V(5), V(6)]]
vDA, vDB = V(7), V(8)
vL = [V(9 + i) for i in range(5)]
vLane = V(14); vT = [V(15)] + [V(249 + i) for i in range(7)]
vXr, vXc, vWx, vWy, vXA, vXB, vXC, vWA, vWB = [V(240 + i) for i in range(9)]
def G(i): return V(16 + 4 * i, 4)
def acc(q, dt): return G(8 * q + dt)
def Qf(q, s): return acc(q, 2 * s)
_pool = [G(i) for i in range(40, 56)] + [acc(q, 2 * s + 1) for q in range(5) for s in range(4)]
def St(j): return _pool[j]
def Pf(par, f): return _pool[18 + 9 * par + f]
def Of(q, dt): return A(4 * (8 * q + dt), 4)
def Kf(b, s): return A(160 + 16 * b + 4 * s, 4)
def Vf(dt, c): return A(192 + 8 * (dt % 4) + 4 * c, 4)
def Bx(q, ks): return G(40 + 2 * q + ks)
def Aw(dt, ks): return A(192 + 8 * (dt % 4) + 4 * ks, 4)

def srd(dst, base_lo, base_hi, off, size):
    return [salu("s_add_u32", dst[0], base_lo, off), salu("s_addc_u32", dst[1], base_hi, 0),
            salu("s_mov_b32", dst[2], size), salu("s_mov_b32", dst[3], 0x20000)]

class Opt: pass

PROF = {"main": {"data": 1, "qend": 2, "loop": 3, "aend": 4, "flag": 5, "poll": 6, "end": 7},
        "p2": {"poll": 1, "p3": 2, "p7": 3, "p11": 4, "p15": 5, "red": 6, "end": 7},
        "q": {"data": 1, "q6": 2, "q7": 3, "qend": 4, "qepi": 5, "b0": 6, "loop": 7},
        "tail": {"loopend": 1, "aend": 2, "cbar": 3, "ost": 4, "flag": 5, "poll": 6, "end": 7}}
def stamp(o, idx):
    if not o.stamps: return []
    if isinstance(idx, str):
        if idx not in PROF[o.prof]: return []
        idx = PROF[o.prof][idx]
    return [smem(f"s_memtime {sTm}", [sTm]), smem(f"s_memrealtime {sStamp[2*idx:2*idx+2]}", [sStamp[2*idx:2*idx+2]]), Wait(lgkm=0), salu("s_mov_b32", sStamp[2*idx+1], sTm[0])]

def stamp_store(o, n):
    if not o.stamps: return []
    if o.stamps == 2:
        ins = [salu("s_lshl_b32", sT0, sW, 8), salu("s_add_u32", sT0, sT0, S(2)), scmp("s_cmp_ge_u32", sT0, 2), branch("s_cbranch_scc1", "L_nost"),
               salu("s_mul_i32", sT0, sT0, 28), salu("s_add_u32", sT0, sT0, 8)] + srd(srdDBG, sARG[12], sARG[13], sT0, 28) + [valu("v_mov_b32", vT[1], 0)]
        for k in range(1, n):
            ins += [salu("s_sub_u32", sT1, sStamp[2 * k], sStamp[0]), valu("v_mov_b32", vT[2], sT1), nop(1), buf_store(vT[2], vT[1], srdDBG, 0, 4 * (k - 1), op="buffer_store_dword"), nop(1)]
        return ins + [label("L_nost")]
    ins = [salu("s_lshl_b32", sT0, S(2), 2), salu("s_add_u32", sT0, sT0, sW), salu("s_lshl_b32", sT0, sT0, 6),
           salu("s_add_u32", sT0, sT0, WS_DBG + o.dbg_off)]
    ins += srd(srdDBG, sARG[14], sARG[15], sT0, 64)
    ins += [valu("v_mov_b32", vT[1], 0)]
    for k in range(0, n):
        ins += [valu("v_mov_b32", vT[2], sStamp[2 * k]), nop(1), buf_store(vT[2], vT[1], srdDBG, 0, 4 * k, op="buffer_store_dword"), nop(1)]
        if k == 0: ins += [raw(f"s_getreg_b32 {sStamp[1]}, hwreg(HW_REG_XCC_ID, 0, 4)", wr=[sStamp[1]])]
        ins += [valu("v_mov_b32", vT[2], sStamp[2 * k + 1]), nop(1), buf_store(vT[2], vT[1], srdDBG, 0, 32 + 4 * k, op="buffer_store_dword"), nop(1)]
    return ins

def head_A(o):
    ins = [scmp("s_cmp_ge_u32", S(2), 256), branch("s_cbranch_scc1", "L_exitA"),
           smem(f"s_load_dwordx16 {sARG}, s[0:1], 0", [sARG])]
    if o.stamps: ins += [smem(f"s_memrealtime {sStamp[0:2]}", [sStamp[0:2]])]
    t0, t1, t2, t3 = vT[1], vT[2], vT[3], vT[4]
    ins += [valu("v_lshrrev_b32", t0, 6, V(0)), valu("v_and_b32", vLane, 63, V(0)), rfl(sW, t0)]
    if o.map == "m1":
        ins += [salu("s_and_b32", sB, S(2), 7), salu("s_lshr_b32", sH, S(2), 3)]
    else:
        ins += [salu("s_and_b32", sT0, S(2), 1), salu("s_lshl_b32", sT0, sT0, 2), salu("s_lshr_b32", sT1, S(2), 3), salu("s_and_b32", sT1, sT1, 3),
                salu("s_add_u32", sB, sT0, sT1),
                salu("s_lshr_b32", sT0, S(2), 1), salu("s_and_b32", sT0, sT0, 3), salu("s_lshl_b32", sT0, sT0, 3), salu("s_lshr_b32", sT1, S(2), 5),
                salu("s_add_u32", sH, sT0, sT1)]
    l = vLane
    ins += [valu("v_bfe_u32", t0, l, 2, 3), valu("v_lshlrev_b32", t0, 10, t0),
            valu("v_lshrrev_b32", t1, 5, l), valu("v_lshl_add_u32", t0, t1, 6, t0),
            valu("v_and_b32", t1, 3, l), valu("v_lshl_add_u32", t0, t1, 4, t0),
            salu("s_lshl_b32", sT0, sW, 16), valu("v_add_u32", vXA, sT0, t0),
            valu("v_add_u32", vXB, 8192, vXA), valu("v_xor_b32", vXB, 32, vXB),
            salu("s_lshl_b32", sT0, sW, 13), salu("s_add_u32", sT0, sT0, 256 * 1024), valu("v_add_u32", vXC, sT0, t0),
            salu("s_and_b32", sT1, sW, 1), salu("s_lshl_b32", sT1, sT1, 5), valu("v_xor_b32", vXC, sT1, vXC)]
    ins += [valu("v_lshrrev_b32", t2, 4, l), valu("v_lshlrev_b32", t2, 6, t2), valu("v_lshl_add_u32", t2, t1, 4, t2),
            valu("v_bfe_u32", t3, l, 2, 2),
            valu("v_lshl_add_u32", vWA, t3, 13, t2), salu("s_lshl_b32", sT0, sW, 17), valu("v_add_u32", vWA, sT0, vWA), valu("v_xor_b32", vWB, 32, vWA),
            valu("v_lshl_add_u32", vDA, t3, 8, t2), salu("s_lshl_b32", sW4k, sW, 12), valu("v_add_u32", vDA, sW4k, vDA), valu("v_xor_b32", vDB, 32, vDA)]
    ins += [Wait(lgkm=0)]
    ins += [salu("s_mul_i32", sT0, sB, 294912)] + srd(srdX, sARG[0], sARG[1], sT0, 294912)
    ins += [salu("s_lshl_b32", sT0, sH, 8), salu("s_sub_u32", sT1, 4194304, sT0)] + srd(srdWQ, sARG[6], sARG[7], sT0, sT1)
    return ins

def q_dmas(o, soff_x, soff_w, buf, tag):
    out = []
    fx, fw = o.fx, o.fw
    for t in range(4):
        for hh in range(2):
            out.append([salu("s_add_u32", sT0, soff_x, t * 16384), salu("s_add_u32", "m0", sT2, t * 2048 + hh * 1024), None,
                        buf_dma(vXA if hh == 0 else vXB, srdX, sT0, 0, fx, tag=tag)])
    out.append([salu("s_add_u32", "m0", sT3, 32768), None, buf_dma(vXC, srdX, soff_x, 0, fx, tag=tag)])
    for i in range(4):
        out.append([salu("s_add_u32", sT0, soff_w, i * 32768), salu("s_add_u32", "m0", sT1, 36864 + i * 1024), None,
                    buf_dma(vWA if i < 2 else vWB, srdWQ, sT0, 0, fw, tag=tag)])
    pre = [salu("s_lshl_b32", sT2, sW, 13), salu("s_add_u32", sT2, sT2, buf), salu("s_lshl_b32", sT3, sW, 10), salu("s_add_u32", sT3, sT3, buf),
           salu("s_add_u32", sT1, sW4k, buf)]
    return pre, out

def kv_dma(o, kind, stage_soff, m0val, tag):
    srd_ = srdK if kind == "K" else srdV
    out = []
    for i in range(4):
        v = (vDA if i < 2 else vDB) if kind == "K" else (vDA if i % 2 == 0 else vDB)
        out.append((list(m0val) + [None] if i == 0 else []) + [buf_dma(v, srd_, stage_soff, i * 1024, o.fkv, tag=tag)])
    return out

def flat(groups):
    return [nop(0) if x is None else x for g in groups for x in g]

def q_adv():
    return [salu("s_add_u32", sQx, sQx, 128), salu("s_and_b32", sQx, sQx, 1023), salu("s_add_u32", sQw, sQw, 524288), salu("s_and_b32", sQw, sQw, 4194303)]
def q_touch(o):
    if not o.qtouch: return []
    l = vLane; t0, t1 = vT[1], vT[2]
    ins = []
    if o.map == "m1":
        ins += [valu("v_mul_u32_u24", t0, 43, l), valu("v_lshrrev_b32", t0, 8, t0),
                valu("v_mul_u32_u24", t1, 6, t0), valu("v_sub_u32", t1, l, t1),
                valu("v_min_u32", t0, 8, t0), salu("s_mul_i32", sT0, sH, 9), valu("v_add_u32", t0, sT0, t0),
                valu("v_lshlrev_b32", t0, 10, t0), valu("v_lshl_add_u32", t0, t1, 7, t0),
                buf_load(A(255), t0, srdX, 0, 256, o.fx, op="buffer_load_dword", tag=("T", 0))]
        ins += [valu("v_lshrrev_b32", t0, 1, l), valu("v_lshlrev_b32", t0, 15, t0), valu("v_and_b32", t1, 1, l), valu("v_lshl_add_u32", t0, t1, 7, t0),
                salu("s_lshl_b32", sT0, sW, 13)]
        for i in range(3):
            ins += [salu("s_add_u32", sT1, sT0, (128 + 128 * i) * 8192), buf_load(A(255), t0, srdWQ, sT1, 0, o.fw, op="buffer_load_dword", tag=("T", 0))]
    else:
        ins += [valu("v_mul_u32_u24", t0, 43, l), valu("v_lshrrev_b32", t0, 8, t0),
                valu("v_mul_u32_u24", t1, 6, t0), valu("v_sub_u32", t1, l, t1),
                valu("v_min_u32", t0, 8, t0), salu("s_and_b32", sT0, sH, 7), salu("s_mul_i32", sT0, sT0, 36), salu("s_mul_i32", sT1, sW, 9), salu("s_add_u32", sT0, sT0, sT1),
                valu("v_add_u32", t0, sT0, t0), valu("v_lshlrev_b32", t0, 10, t0), valu("v_lshl_add_u32", t0, t1, 7, t0),
                buf_load(A(255), t0, srdX, 0, 256, o.fx, op="buffer_load_dword", tag=("T", 0))]
        ins += [valu("v_lshrrev_b32", t0, 1, l), valu("v_min_u32", t0, 23, t0), valu("v_lshlrev_b32", t0, 17, t0), valu("v_and_b32", t1, 1, l), valu("v_lshl_add_u32", t0, t1, 7, t0),
                salu("s_and_b32", sT0, sB, 3), salu("s_lshl_b32", sT1, sW, 2), salu("s_add_u32", sT0, sT0, sT1), salu("s_add_u32", sT0, sT0, 128), salu("s_lshl_b32", sT0, sT0, 13),
                buf_load(A(255), t0, srdWQ, sT0, 0, o.fw, op="buffer_load_dword", tag=("T", 0))]
    return ins

def startup_A(o):
    ins = zero_flags_a(o) if o.fused else []
    if o.rot:
        ins += [salu("s_lshl_b32", sT0, sB, 1), salu("s_add_u32", sT0, sT0, sH), salu("s_and_b32", sT0, sT0, 7), salu("s_lshl_b32", sQx, sT0, 7), salu("s_lshl_b32", sQw, sT0, 19)]
    else:
        ins += [salu("s_mov_b32", sQx, 0), salu("s_mov_b32", sQw, 0)]
    pre, g = q_dmas(o, sQx, sQw, QBUF, ("Q", 0)); ins += pre + flat(g)
    ins += q_adv()
    pre, g = q_dmas(o, sQx, sQw, 2 * QBUF, ("Q", 1)); ins += pre + flat(g)
    ins += q_touch(o)
    ins += q_adv() + [salu("s_mov_b32", sBufD, 0), salu("s_mov_b32", sBufR, QBUF)]
    ins += [salu("s_lshl_b32", sT0, sB, 5), salu("s_add_u32", sT0, sT0, sH), salu("s_lshl_b32", sT0, sT0, 18)]
    if o.samekv: ins += [salu("s_and_b32", sT0, S(2), 7), salu("s_lshl_b32", sT0, sT0, 18)]
    ins += srd(srdK, sARG[2], sARG[3], sT0, 262144) + srd(srdV, sARG[4], sARG[5], sT0, 262144)
    ins += [salu("s_mul_i32", sT0, sB, 18 * 131072), salu("s_lshl_b32", sT1, sH, 12), salu("s_add_u32", sT0, sT0, sT1),
            salu("s_sub_u32", sT1, 18874368, sT0), salu("s_add_u32", sT0, sT0, WS_O)] + srd(srdO, sARG[14], sARG[15], sT0, sT1)
    ins += srd(srdWO, sARG[8], sARG[9], 0, 4194304) + srd(srdWT, sARG[14], sARG[15], WS_WOT, 4194304)
    ins += [salu("s_mov_b32", sC[0], f2u(SCALE)), salu("s_mov_b32", sC[1], f2u(SCALE)),
            salu("s_mov_b32", sExecHi[0], 0), salu("s_mov_b32", sExecHi[1], -1)]
    l = vLane; t0, t1, t2, t3, t4 = vT[1], vT[2], vT[3], vT[4], vT[5]
    ins += [valu("v_lshrrev_b32", t0, 4, l), valu("v_bfe_u32", t1, l, 3, 1), valu("v_lshlrev_b32", t2, 1, t1), valu("v_xor_b32", t2, t2, t0),
            valu("v_lshlrev_b32", t2, 4, t2)]
    ins += [valu("v_lshl_add_u32", t3, t1, 10, t2), valu("v_and_b32", t4, 7, l), valu("v_lshl_add_u32", t3, t4, 6, t3),
            salu("s_lshl_b32", sT0, sW, 13), salu("s_add_u32", sT0, sT0, QBUF), valu("v_add_u32", vXr, sT0, t3),
            salu("s_and_b32", sT0, sW, 1), salu("s_lshl_b32", sT0, sT0, 11), salu("s_add_u32", sT0, sT0, QBUF + 32768), valu("v_add_u32", vXc, sT0, t3)]
    ins += [valu("v_bfe_u32", t3, l, 2, 2), valu("v_lshl_add_u32", t3, t3, 10, t2), valu("v_and_b32", t4, 3, l), valu("v_lshl_add_u32", t3, t4, 6, t3),
            salu("s_lshr_b32", sT0, sW, 1), salu("s_lshl_b32", sT0, sT0, 13), valu("v_add_u32", vKa[0], sT0, t3), valu("v_xor_b32", vKa[1], 8192, vKa[0])]
    ins += [valu("v_bfe_u32", t3, l, 2, 2), valu("v_lshlrev_b32", t3, 6, t3), valu("v_lshl_add_u32", t3, t4, 3, t3),
            valu("v_lshl_add_u32", t2, t0, 10, t3), valu("v_and_b32", t1, 1, t0), valu("v_lshl_add_u32", t2, t1, 5, t2),
            salu("s_add_u32", sT0, sT0, 65536), valu("v_add_u32", vVa[0][0], sT0, t2), valu("v_xor_b32", vVa[0][1], 32, vVa[0][0]),
            valu("v_xor_b32", vVa[1][0], 8192, vVa[0][0]), valu("v_xor_b32", vVa[1][1], 32, vVa[1][0])]
    ins += [valu("v_bfe_u32", t3, l, 2, 2), valu("v_lshlrev_b32", t3, 6, t3), valu("v_lshl_add_u32", t3, t0, 11, t3),
            valu("v_lshlrev_b32", t1, 1, t1), valu("v_xor_b32", t1, t1, t4), valu("v_lshl_add_u32", t3, t1, 4, t3),
            valu("v_lshrrev_b32", t4, 1, t4), valu("v_lshl_add_u32", t3, t4, 3, t3),
            valu("v_add_u32", vWx, QBUF + 36864, t3), valu("v_xor_b32", vWy, 8, vWx)]
    for q in range(5):
        ins += [valu("v_mov_b32", vL[q], 0)]
        for dt in range(8):
            for r in range(4):
                ins += [valu("v_mov_b32", acc(q, dt)[r], 0), valu("v_accvgpr_write_b32", Of(q, dt)[r], 0)]
    ins += [wait_vm(tags=[("Q", 0)]), barrier()]
    if o.fused: ins += zero_flags_b(o)
    ins += stamp(o, "data" if o.fused else 1)
    for dt in range(2): ins += a_loads(dt)
    for q in range(5):
        for ks in range(2): ins += [b_load(q, ks)]
    ins += [salu("s_mov_b32", sCnt, 6)]
    return ins

def a_loads(dt):
    s, T = dt >> 1, dt & 1
    return [ds_read("ds_read_b64_tr_b16", Aw(dt, ks)[2 * k:2 * k + 2], vWx if T == 0 else vWy, ks * 8192 + k * 1024 + s * 256) for ks in range(2) for k in range(2)]
def b_load(q, ks):
    return ds_read("ds_read_b128", Bx(q, ks), vXr if q < 4 else vXc, (q * 2048 if q < 4 else 0) + ks * 512)
def k_load(n, kt, s):
    return ds_read("ds_read_b128", Kf(kt & 1, s), vKa[kt >> 1], (n & 1) * 16384 + (kt & 1) * 4096 + s * 256)
def v_load(n, dt, c, jh):
    return ds_read("ds_read_b64_tr_b16", Vf(dt, c)[2 * jh:2 * jh + 2], vVa[c][dt & 1], (n & 1) * 16384 + jh * 4096 + (dt >> 1) * 256)

def q_stage(o, mode):
    gaps = [[] for _ in range(80)]
    M = [mfma(acc(q, dt), Aw(dt, ks), Bx(q, ks)) for dt in range(8) for q in range(5) for ks in range(2)]
    pre = []
    when = {2: 0, 3: 5, 4: 12, 5: 22, 6: 32, 7: 42}
    for dt, g0 in when.items():
        for k, ld in enumerate(a_loads(dt)): gaps[g0 + k].append(ld)
    if mode == "loop":
        p_, groups = q_dmas(o, sQx, sQw, sBufD, lambda e: ("Q", e["s"] + 2))
        pre += p_
    else:
        groups = []
        lst = [("K", 0), ("K", 1), ("K", 2)] if mode == "s6" else [("K", 3), ("V", 0), ("V", 1)]
        for kind, st in lst:
            m0 = [salu("s_mov_b32", sT0, st * 16384), salu("s_add_u32", "m0", sW4k, st * 16384 + (65536 if kind == "V" else 0))]
            groups += kv_dma(o, kind, sT0, m0, (kind, st))
    free = [g for g in range(1, 58) if not gaps[g]]
    step = len(free) // len(groups)
    for k, grp in enumerate(groups):
        sal = [x for x in grp[:-1] if x is not None]
        a, b = free[k * step], free[k * step + 1]
        gaps[a] += sal; gaps[b].insert(0, grp[-1])
    for dt in range(8):
        regs = [Aw(dt, 0), Aw(dt, 1)]
        if dt == 0: pre.append(wait_lgkm(Aw(0, 0), Bx(0, 0)))
        else: gaps[10 * dt - 1].insert(0, wait_lgkm(*(regs + ([Aw(7, 0), Aw(7, 1)] if dt == 6 else []))))
    for t in range(1, 10):
        q, ks = t >> 1, t & 1
        gaps[t - 1].insert(0, wait_lgkm(Bx(q, ks), Aw(0, ks)))
    if mode == "loop": tg = [lambda e: ("Q", e["s"] + 1)]
    elif mode == "s6": tg = [("Q", 7)]
    else: tg = [("K", 0)]
    gaps[58] += [wait_vm(tags=tg)]
    gaps[59] += [barrier()]
    if mode != "s7":
        gaps[50] += [salu("s_add_u32", sT4, sBufR, QBUF), scmp("s_cmp_eq_u32", sT4, 3 * QBUF), salu("s_cselect_b32", sT4, 0, sT4)]
        gaps[51] += [salu("s_sub_u32", sDelta, sT4, sBufR)]
        gaps[52] += [salu("s_mov_b32", sBufR, sT4), valu("v_add_u32", vWx, sDelta, vWx)]
        gaps[53] += [valu("v_add_u32", vWy, sDelta, vWy), valu("v_add_u32", vXr, sDelta, vXr)]
        gaps[54] += [valu("v_add_u32", vXc, sDelta, vXc)]
        for k, ld in enumerate(a_loads(0) + a_loads(1)): gaps[60 + k].append(ld)
        for t in range(10): gaps[70 + t].insert(0, b_load(t >> 1, t & 1))
    else:
        for k in range(8): gaps[60 + k].append(k_load(0, k >> 2, k & 3))
    if mode == "loop":
        gaps[67] += q_adv()[:2]; gaps[68] += q_adv()[2:]
        gaps[69] += [salu("s_add_u32", sBufD, sBufD, QBUF), scmp("s_cmp_eq_u32", sBufD, 3 * QBUF), salu("s_cselect_b32", sBufD, 0, sBufD)]
        gaps[79] += [salu("s_sub_u32", sCnt, sCnt, 1), scmp("s_cmp_lg_u32", sCnt, 0), branch("s_cbranch_scc1", "L_qloop")]
    ins = ([label("L_qloop")] if mode == "loop" else []) + pre
    for m, g in zip(M, gaps): ins += [m] + g
    return ins

def wot_dma(o):
    l = vLane; t0, t1 = vT[1], vT[2]
    ins = [salu("s_lshl_b32", sT0, sH, 2), salu("s_add_u32", sT0, sT0, sW), salu("s_lshl_b32", sT0, sT0, 15),
           salu("s_lshl_b32", sT1, sB, 7), salu("s_add_u32", sT0, sT0, sT1),
           valu("v_lshrrev_b32", t0, 3, l), valu("v_lshlrev_b32", t0, 10, t0), valu("v_and_b32", t1, 7, l), valu("v_lshl_add_u32", t0, t1, 4, t0)]
    for i in range(4):
        ins += [salu("s_add_u32", "m0", sW4k, 131072 + i * 1024), salu("s_add_u32", sT1, sT0, i * 8192), buf_dma(t0, srdWO, sT1, 0, o.fwo, tag=("WO", 0))]
    return ins

def wot_finish(o):
    l = vLane; t0, t1, t2 = vT[1], vT[2], vT[3]
    ins = [valu("v_lshrrev_b32", t0, 2, l), valu("v_lshlrev_b32", t0, 7, t0), valu("v_and_b32", t1, 3, l), valu("v_lshl_add_u32", t0, t1, 3, t0),
           salu("s_add_u32", sT0, sW4k, 131072), valu("v_add_u32", t0, sT0, t0),
           valu("v_lshlrev_b32", t2, 4, l),
           salu("s_lshl_b32", sT1, sB, 7), salu("s_lshl_b32", sT0, sH, 2),
           salu("s_add_u32", sT0, sT0, sW), salu("s_add_u32", sT0, sT0, sT1), salu("s_lshl_b32", sT0, sT0, 12),
           wait_vm(tags=[("WO", 0)])]
    dst = [A(224 + 4 * ct, 4) for ct in range(4)]
    for ct in range(4):
        for jh in range(2): ins += [ds_read("ds_read_b64_tr_b16", dst[ct][2 * jh:2 * jh + 2], t0, jh * 2048 + ct * 32)]
    for ct in range(4):
        ins += [wait_lgkm(dst[ct]), buf_store(dst[ct], t2, srdWT, sT0, ct * 1024, o.fst, tag=("WTST", 0))]
    return ins

def q_epilogue(o):
    ins = []
    for q in range(5):
        for s in range(4):
            X, Y = acc(q, 2 * s), acc(q, 2 * s + 1)
            for T in (X, Y):
                for h in range(2): ins += [valu("v_pk_mul_f32", T[2 * h:2 * h + 2], T[2 * h:2 * h + 2], sC)]
            ins += [valu("v_cvt_pk_bf16_f32", X[0], X[0], X[1]), valu("v_cvt_pk_bf16_f32", X[1], X[2], X[3]),
                    valu("v_cvt_pk_bf16_f32", X[2], Y[0], Y[1]), valu("v_cvt_pk_bf16_f32", X[3], Y[2], Y[3])]
    ins += [salu("s_mov_b64", "exec", sExecHi)]
    for q in range(5):
        for s in range(4):
            X = Qf(q, s)
            ins += [vswap("v_swap_b32", X[0], X[2]), vswap("v_swap_b32", X[1], X[3])]
    ins += [salu("s_mov_b64", "exec", -1)]
    return ins

TILES = [(kt, q) for kt in range(2) for q in range(5)] + [(kt, q) for kt in (2, 3) for q in range(4)]
def qk_list(n):
    out = []
    for j, (kt, q) in enumerate(TILES):
        for s in range(4): out.append(mfma(St(j), Kf(kt & 1, s), Qf(q, s), 0 if s == 0 else None))
    return out
def pv_list(n):
    out = []
    for dt in range(8):
        for q in range(4):
            for c in range(2): out.append(mfma(Of(q, dt), Vf(dt, c), Pf(n & 1, 2 * q + c)))
        out.append(mfma(Of(4, dt), Vf(dt, 0), Pf(n & 1, 8)))
    return out

class Tmpl:
    def __init__(self, o):
        self.o = o
        P = 144
        self.sh = [None] * P; self.post = [[] for _ in range(P)]; self.cap = [2 if t % 2 else 0 for t in range(P)]
        self.build()
    def shadow(self, fn, lo, hi, par, cost=0):
        for t in range(lo, hi + 1):
            if t % 2 == par and self.sh[t % 144] is None:
                self.sh[t % 144] = (fn, -(t // 144)); self.cap[t % 144] -= cost
                return t
        raise Exception(f"no shadow slot in {lo}..{hi}")
    def build(self):
        o = self.o
        valid = lambda st: 0 <= st <= 15
        tg = lambda kind, st: (lambda e: (kind, st + 2 * e.get("k", 0)))
        self.shadow(lambda n: (wait_vm(tags=[tg("K", n + 1), tg("V", n)]) if not o.nowait else nop(0)) if n <= 15 else None, 70, 70, 0)
        self.shadow(lambda n: barrier() if n <= 15 else None, 72, 72, 0)
        dm = [("V", i) for i in range(4)] + [("K", i) for i in range(4)]
        pos = [75 + o.dstep * k for k in range(8)]
        for (kind, i), t in zip(dm, pos):
            v = (vDA if i < 2 else vDB) if kind == "K" else (vDA if i % 2 == 0 else vDB)
            d = 2 if kind == "V" else 4
            ok = lambda n, d=d: ((1 <= n <= 14) or (n == 0)) and not o.nodma
            if i == 0:
                def m0f(n, kind=kind, ok=ok):
                    if not ok(n): return None
                    if kind == "K": return salu("s_add_u32", "m0", sRing, (n & 1) * 16384)
                    return salu("s_xor_b32", "m0", sRing, 65536 + 32768 + (n & 1) * 16384)
                self.shadow(m0f, t - 1, t - 1, 0)
            self.shadow(lambda n, kind=kind, i=i, v=v, d=d, ok=ok: buf_dma(v, srdK if kind == "K" else srdV, sKoff if kind == "K" else sVoff, i * 1024, o.fkv, tag=tg(kind, n + d)) if ok(n) else None, t, t + 4, 1, cost=2)
        self.shadow(lambda n: salu("s_add_u32", sVoff, sVoff, 16384) if 0 <= n <= 14 else None, 132, 140, 0)
        self.shadow(lambda n: salu("s_add_u32", sKoff, sKoff, 16384) if 0 <= n <= 14 else None, 144 + 62, 144 + 68, 0)
        self.shadow(lambda n: salu("s_xor_b32", sRing, sRing, 32768) if (0 <= n <= 14 and n & 1) else None, 144 + 62, 144 + 68, 0)
        for s in range(4): self.shadow(lambda n, s=s: k_load(n, 2, s) if valid(n) else None, 21, 35, 1, cost=1)
        for s in range(4): self.shadow(lambda n, s=s: k_load(n, 3, s) if valid(n) else None, 41, 51, 1, cost=1)
        for dt in range(4, 8):
            lo = 72 + 9 * (dt - 4) + 9
            for c in range(2):
                for jh in range(2): self.shadow(lambda n, dt=dt, c=c, jh=jh: v_load(n - 1, dt, c, jh) if valid(n - 1) else None, lo, lo + 22, 1, cost=1)
        for kt in range(2):
            for s in range(4): self.shadow(lambda n, s=s, kt=kt: k_load(n + 1, kt, s) if valid(n + 1) else None, 115 + 8 * kt if kt else 73, 141, 1, cost=1)
        los = [1, 9, 29, 53]
        for dt in range(4):
            for c in range(2):
                for jh in range(2): self.shadow(lambda n, dt=dt, c=c, jh=jh: v_load(n - 1, dt, c, jh) if valid(n - 1) else None, los[dt], 69, 1, cost=1)
        for kt, t in ((0, 142), (1, 18), (2, 38), (3, 54)):
            d = 1 if kt == 0 else 0
            self.shadow(lambda n, kt=kt, d=d: wait_lgkm(*[Kf(kt & 1, s) for s in range(4)]) if valid(n + d) else None, t, t, 0)
        for dt in range(8):
            t = 72 + 9 * dt - 1
            t -= t % 2
            if dt == 0: t = 68
            self.shadow(lambda n, dt=dt: wait_lgkm(Vf(dt, 0), Vf(dt, 1)) if valid(n - 1) else None, t - 2 if self.sh[t] else t, t, 0)
        extra = {}
        extra[56] = [lambda n, r=r: valu("v_xor_b32", r, 32768, r) if (n & 1 and n <= 14) else None for r in vKa]
        extra[136] = [lambda n, r=r: valu("v_xor_b32", r, 32768, r) if (n % 2 == 0 and 2 <= n <= 15) else None for r in vVa[0]]
        extra[138] = [lambda n, r=r: valu("v_xor_b32", r, 32768, r) if (n % 2 == 0 and 2 <= n <= 15) else None for r in vVa[1]]
        lag = o.lag
        ready = []
        k = 0
        nextra = 0
        for t in range(lag, lag + 144 + 12):
            tt = t % 144; dl = -(t // 144)
            if tt in extra and t < lag + 144:
                for f in extra[tt]: self.post[tt].append((f, 0 if t < 144 else 0))
            if t % 2 == 0 and k < 72:
                j, r = k // 4, k % 4
                kt, q = TILES[j]
                self.post[tt].append((lambda n, j=j, r=r: valu("v_exp_f32", St(j)[r], St(j)[r]) if valid(n) else None, dl))
                newops = [(lambda n, j=j, r=r, q=q: valu("v_add_f32", vL[q], St(j)[r], vL[q]) if valid(n) else None)]
                if r & 1:
                    f = 2 * q + (kt >> 1) if q < 4 else 8
                    newops.append(lambda n, j=j, r=r, f=f, kt=kt: valu("v_cvt_pk_bf16_f32", Pf(n & 1, f)[2 * (kt & 1) + (r >> 1)], St(j)[r - 1], St(j)[r]) if valid(n) else None)
                k += 1
                if len(ready) >= o.backlog:
                    self.post[tt].append((ready.pop(0), dl)); nextra += 1
                ready += newops
            elif t % 2 == 1 or k >= 72:
                c = self.cap[tt] if t < lag + 144 else 0
                if k >= 72 and t >= lag + 143: c = max(c, 1)
                for _ in range(max(c, 0)):
                    if ready: self.post[tt].append((ready.pop(0), dl))
                if t < lag + 144: self.cap[tt] = 0
        assert not ready, len(ready)
    def emit(self, n0, t0, n1, t1):
        ins = []
        n, t = n0, t0
        cache = {}
        while (n, t) != (n1, t1):
            if n not in cache: cache[n] = (qk_list(n), pv_list(n - 1))
            if t < 72:
                if 0 <= n <= 15: ins.append(cache[n][0][t])
            elif 0 <= n - 1 <= 15: ins.append(cache[n][1][t - 72])
            if self.sh[t]:
                x = self.sh[t][0](n + self.sh[t][1])
                if x: ins.append(x)
            for f, dl in self.post[t]:
                x = f(n + dl)
                if x: ins.append(x)
            t += 1
            if t == 144: t = 0; n += 1
        return ins

def o_epilogue(o):
    ins = []
    l = vLane; t0, t1, t2, t3 = vT[1], vT[2], vT[3], vT[4]
    ins += [valu("v_lshlrev_b32", t0, 4, l), salu("s_lshl_b32", sT0, sW, 13), salu("s_add_u32", sT0, sT0, 131072), valu("v_add_u32", t1, sT0, t0),
            valu("v_xor_b32", t2, 16384, t1),
            salu("s_lshl_b32", sT0, sW, 8), salu("s_add_u32", sT0, sT0, 49152), valu("v_lshl_add_u32", t3, l, 2, sT0)]
    for dt in range(8): ins += [ds_write("ds_write_b128", t1, Of(4, dt), dt * 1024)]
    ins += [ds_write("ds_write_b32", t3, vL[4]), valu("v_xor_b32", t3, 512, t3), Wait(lgkm=0), barrier()] + (stamp(o, "cbar") if o.fused else [])
    part = [St(dt) for dt in range(8)]
    for dt in range(8): ins += [ds_read("ds_read_b128", part[dt], t2, dt * 1024)]
    ins += [ds_read("ds_read_b32", vT[5], t3)]
    salu_q = lambda q: [salu("s_mov_b32", sT1, q * 131072)]
    ins += [salu("s_lshl_b32", sT0, sW, 19), valu("v_add_u32", vT[6], sT0, t0),
            salu("s_and_b32", sT0, sW, 1), salu("s_add_u32", sT0, sT0, 16), salu("s_lshl_b32", sT0, sT0, 17), valu("v_add_u32", vT[7], sT0, t0)]
    tmp = [Pf(0, f) for f in range(9)] + [Pf(1, f) for f in range(9)]
    order = [0, 1, 2, 3, 4]
    for q in order:
        if q == 4: ins += [wait_lgkm(vT[5]), valu("v_add_f32", vL[4], vT[5], vL[4])]
        L = vL[q]
        for op in ("v_permlane32_swap_b32", "v_permlane16_swap_b32"):
            ins += [valu("v_mov_b32", t1, L), vswap(op, L, t1), valu("v_add_f32", L, L, t1)]
        ins += [valu("v_rcp_f32", t1, L)]
        ins += [salu("s_mov_b32", sT1, q * 131072 if q < 4 else 0)]
        for s in range(4):
            X, Y = tmp[(8 * q + 2 * s) % 18], tmp[(8 * q + 2 * s + 1) % 18]
            for T, dt in ((X, 2 * s), (Y, 2 * s + 1)):
                for r in range(4): ins += [valu("v_accvgpr_read_b32", T[r], Of(q, dt)[r])]
                if q == 4:
                    for r in range(4): ins += [valu("v_add_f32", T[r], T[r], part[dt][r])]
                for h in range(2): ins += [valu("v_pk_mul_f32", T[2 * h:2 * h + 2], T[2 * h:2 * h + 2], Reg("v", t1.lo, 2), extra=" op_sel_hi:[1,0]")]
            ins += [valu("v_cvt_pk_bf16_f32", X[0], X[0], X[1]), valu("v_cvt_pk_bf16_f32", X[1], X[2], X[3]),
                    valu("v_cvt_pk_bf16_f32", X[2], Y[0], Y[1]), valu("v_cvt_pk_bf16_f32", X[3], Y[2], Y[3]),
                    buf_store(X, vT[6] if q < 4 else vT[7], srdO, sT1, s * 1024, o.fost, tag=("OST", 0))]
    return ins

def kernel_A(o):
    p = Prog("A")
    p.seg(head_A(o)); p.seg(startup_A(o))
    p.seg(q_stage(o, "loop"), envs=[{"s": s} for s in range(6)], fix=False)
    p.seg(q_stage(o, "s6"), envs=[{"s": 6}], fix=False)
    p.seg(q_stage(o, "s7") + wot_dma(o), envs=[{"s": 7}])
    p.seg(stamp(o, 2) + q_epilogue(o))
    p.seg([salu("s_mov_b32", sKoff, 4 * 16384), salu("s_mov_b32", sVoff, 2 * 16384), salu("s_mov_b32", sRing, sW4k), salu("s_mov_b32", sCnt, 7),
           wait_lgkm(*[Kf(0, s) for s in range(4)])] + stamp(o, 3))
    T = Tmpl(o)
    p.seg(T.emit(0, 0, 0, 100) + wot_finish(o) + T.emit(0, 100, 1, 70))
    body = [label("L_aloop")] + T.emit(1, 70, 3, 70)
    body += [salu("s_sub_u32", sCnt, sCnt, 1), scmp("s_cmp_lg_u32", sCnt, 0), branch("s_cbranch_scc1", "L_aloop")]
    p.seg(stamp(o, 4))
    p.seg(body, envs=[{"k": k} for k in range(7)], fix=False)
    p.seg(stamp(o, 5))
    p.seg(T.emit(15, 70, 17, 0))
    p.seg(stamp(o, 6) + o_epilogue(o) + stamp(o, 7) + stamp_store(o, 8) + [label("L_exitA"), raw("s_endpgm")])
    p.finalize()
    c, nm = est_cycles(body)
    print(f"attention loop body: est {c} cycles for {nm} mfma -> {c/nm*2:.2f} cyc/slot, {len(body)} instrs")
    return p

def kernel_B(o):
    p = Prog("B")
    sMj, sNj = S(66), S(67)
    l = vLane; t0, t1, t2 = vT[1], vT[2], vT[3]
    vA, vB, vBc = V(1), V(2), V(3)
    ins = [scmp("s_cmp_ge_u32", S(2), 256), branch("s_cbranch_scc1", "L_exitB"),
           smem(f"s_load_dwordx16 {sARG}, s[0:1], 0", [sARG])]
    if o.stamps: ins += [smem(f"s_memrealtime {sStamp[0:2]}", [sStamp[0:2]])]
    ins += [valu("v_lshrrev_b32", t0, 6, V(0)), valu("v_and_b32", vLane, 63, V(0)), rfl(sW, t0),
            salu("s_and_b32", sB, S(2), 7), salu("s_lshr_b32", sMj, S(2), 3), salu("s_and_b32", sMj, sMj, 3), salu("s_lshr_b32", sNj, S(2), 5),
            valu("v_lshlrev_b32", t0, 4, l),
            salu("s_lshl_b32", sT0, sW, 17), valu("v_add_u32", vA, sT0, t0),
            salu("s_lshl_b32", sT0, sW, 15), salu("s_lshl_b32", sT1, sMj, 19), salu("s_add_u32", sT1, sT1, sT0), valu("v_add_u32", vB, sT1, t0),
            valu("v_and_b32", t1, 0x37, l), salu("s_and_b32", sT1, sMj, 1), salu("s_lshl_b32", sT1, sT1, 3), valu("v_or_b32", t1, sT1, t1), valu("v_lshlrev_b32", t1, 4, t1),
            salu("s_lshr_b32", sT1, sMj, 1), salu("s_add_u32", sT1, sT1, 16), salu("s_lshl_b32", sT1, sT1, 17), salu("s_add_u32", sT1, sT1, sT0), valu("v_add_u32", vBc, sT1, t1),
            Wait(lgkm=0),
            salu("s_mul_i32", sT0, sB, 18 * 131072), salu("s_add_u32", sT0, sT0, WS_O)] + srd(srdO, sARG[14], sARG[15], sT0, 18 * 131072)
    ins += [salu("s_lshl_b32", sT0, sNj, 19), salu("s_add_u32", sT0, sT0, WS_WOT)] + srd(srdWT, sARG[14], sARG[15], sT0, 524288)
    sRT = [S(96 + i) for i in range(4)]; sKA = S(100); sKC = S(101)
    D = 3
    def Af(pr, k, ct): return A(4 * (18 * pr + 4 * k + ct), 4)
    def Bf(pr, k, rt): return A(4 * (18 * pr + 8 + 5 * k + rt), 4)
    def Cf(ct, rt): return G(5 * ct + rt)
    def loads(pr):
        out = []
        for k in range(2):
            for ct in range(4):
                off = (4 * k + ct) * 1024
                out.append(buf_load(Af(pr, k, ct), vA, srdWT, sKA if off < 4096 else sKC, off % 4096, o.fld))
            for rt in range(5): out.append(buf_load(Bf(pr, k, rt), vB if rt < 4 else vBc, srdO, sRT[rt % 4] if rt < 4 else sRT[0], k * 1024, o.fld))
        return out
    def adv(): return [salu("s_add_u32", r, r, 2048) for r in sRT] + [salu("s_add_u32", sKA, sKA, 8192), salu("s_add_u32", sKC, sKC, 8192)]
    ins += [salu("s_mov_b32", sRT[i], i * 131072) for i in range(4)] + [salu("s_mov_b32", sKA, 0), salu("s_mov_b32", sKC, 4096)]
    for pr in range(D): ins += loads(pr) + adv()
    for ct in range(4):
        for rt in range(5):
            for r in range(4): ins += [valu("v_mov_b32", Cf(ct, rt)[r], 0)]
    p.seg(ins + stamp(o, 1))
    def pair(pr, ld):
        M = [mfma(Cf(ct, rt), Af(pr, k, ct), Bf(pr, k, rt)) for ct in range(4) for rt in range(5) for k in range(2)]
        out = [wait_vm(regs=[Af(pr, k, c) for k in range(2) for c in range(4)] + [Bf(pr, k, r) for k in range(2) for r in range(5)])]
        out += M
        if ld: out += loads(pr) + adv()
        return out
    body = [label("L_bloop")] + pair(0, True) + pair(1, True) + pair(2, True) + [salu("s_sub_u32", sCnt, sCnt, 1), scmp("s_cmp_lg_u32", sCnt, 0), branch("s_cbranch_scc1", "L_bloop")]
    p.seg([salu("s_mov_b32", sCnt, 4)])
    p.seg(body, envs=[{} for _ in range(4)])
    p.seg(pair(0, True) + pair(1, False) + pair(2, False) + pair(0, False) + stamp(o, 2))
    ins = [valu("v_lshlrev_b32", t0, 4, l), salu("s_mul_i32", sT0, sW, 20480), valu("v_add_u32", t1, sT0, t0)]
    for ct in range(4):
        for rt in range(5): ins += [ds_write("ds_write_b128", t1, Cf(ct, rt), (5 * ct + rt) * 1024)]
    ins += [Wait(lgkm=0), barrier()]
    ins += [valu("v_bfe_u32", t0, l, 1, 2), valu("v_mul_u32_u24", t0, 5120, t0), valu("v_and_b32", t1, 1, l), valu("v_lshl_add_u32", t0, t1, 9, t0),
            valu("v_lshrrev_b32", t2, 3, l), valu("v_lshl_add_u32", t0, t2, 4, t0),
            salu("s_lshl_b32", sT0, sW, 10), valu("v_add_u32", V(4), sT0, t0)]
    ins += [salu("s_mul_i32", sT0, sB, 294912), salu("s_lshl_b32", sT1, sNj, 7), salu("s_add_u32", sT0, sT0, sT1), salu("s_sub_u32", sT1, 8 * 294912, sT0)] + srd(srdOUT, sARG[10], sARG[11], sT0, sT1)
    ins += [valu("v_and_b32", t1, 7, l), valu("v_lshlrev_b32", t1, 4, t1), valu("v_lshl_add_u32", t1, t2, 10, t1),
            salu("s_lshl_b32", sT0, sMj, 16), salu("s_lshl_b32", sT1, sW, 14), salu("s_add_u32", sT0, sT0, sT1),
            salu("s_lshl_b32", sT1, sMj, 13), salu("s_add_u32", sT1, sT1, 256 * 1024)]
    def task(addr, off, soff, base):
        out = []
        regs = [[G(base + 2 * wv + h) for h in range(2)] for wv in range(4)]
        for wv in range(4):
            for h in range(2):
                o_ = wv * 20480 + off + h * 256
                out.append(ds_read("ds_read_b128", regs[wv][h], addr, o_))
        for wv in range(1, 4):
            out.append(wait_lgkm(regs[wv][0], regs[wv][1], regs[0][0], regs[0][1]))
            for h in range(2):
                for r in range(4): out.append(valu("v_add_f32", regs[0][h][r], regs[0][h][r], regs[wv][h][r]))
        X, Y = regs[0]
        out += [valu("v_cvt_pk_bf16_f32", X[0], X[0], X[1]), valu("v_cvt_pk_bf16_f32", X[1], X[2], X[3]),
                valu("v_cvt_pk_bf16_f32", X[2], Y[0], Y[1]), valu("v_cvt_pk_bf16_f32", X[3], Y[2], Y[3]),
                buf_store(X, t1, srdOUT, soff, 0)]
        return out
    ins += task(V(4), 0, sT0, 0)
    ins += [salu("s_add_u32", sT2, sT0, 8192)] + task(V(4), 128, sT2, 8)
    ins += [scmp("s_cmp_lg_u32", sW, 0), branch("s_cbranch_scc1", "L_doneB")]
    ins += [valu("v_add_u32", t0, 4096, t0)] + task(t0, 0, sT1, 16)
    ins += [label("L_doneB")] + stamp(o, 3) + stamp_store(o, 4) + [label("L_exitB"), raw("s_endpgm")]
    p.seg(ins)
    p.finalize()
    return p


srdF = srdX
vOne = V(248)
def flag_srd(idx_instrs, size=4):
    return idx_instrs + [salu("s_lshl_b32", sT0, sT0, 7), salu("s_add_u32", sT0, sT0, WS_FLG)] + srd(srdF, sARG[14], sARG[15], sT0, size)
def dbg_srd(): return srd(srdF, sARG[12], sARG[13], 0, 4)
def prod_idx(base):
    return [salu("s_lshl_b32", sT0, sB, 5), salu("s_add_u32", sT0, sT0, sH)] + ([salu("s_add_u32", sT0, sT0, base)] if base else [])
def cons_idx(sbatch, base):
    return [salu("s_lshl_b32", sT0, sbatch, 2), salu("s_add_u32", sT0, sT0, sW), salu("s_lshl_b32", sT0, sT0, 3)] + ([salu("s_add_u32", sT0, sT0, base)] if base else [])
def flag_store(): return buf_store(vOne, vL4, srdF, 0, 0, "sc1", op="buffer_store_dword")
def zero_flags_a(o):
    never = lambda e: False
    ins = [salu("s_lshl_b32", sT0, S(2), 2), salu("s_add_u32", sT0, sT0, sW), scmp("s_cmp_lg_u32", sT0, 3), branch("s_cbranch_scc1", "L_nozero")]
    z = srd(srdOUT, sARG[14], sARG[15], WS_FLG, 512 * 128) + [valu("v_lshlrev_b32", vT[6], 7, vLane), valu("v_mov_b32", vT[7], 0)]
    for i in range(8): z += [salu("s_mov_b32", sT1, i * 8192), buf_store(vT[7], vT[6], srdOUT, sT1, 0, "sc1", op="buffer_store_dword")]
    ins += with_cond(z, never)
    return ins + [label("L_nozero")]
def zero_flags_b(o):
    never = lambda e: False
    ins = [salu("s_lshl_b32", sT0, S(2), 2), salu("s_add_u32", sT0, sT0, sW), scmp("s_cmp_lg_u32", sT0, 3), branch("s_cbranch_scc1", "L_nozero2")]
    ins += with_cond(srd(srdOUT, sARG[12], sARG[13], 0, 4) + [valu("v_lshlrev_b32", vT[6], 2, vLane), valu("v_mov_b32", vT[7], 1),
                     buf_store(vT[7], vT[6], srdOUT, 0, 0, "sc1", op="buffer_store_dword")], never)
    return ins + [label("L_nozero2")]
vL4 = V(0)
def poll_issue(reg): return [buf_load(reg, vL4, srdF, 0, 0, "sc1", op="buffer_load_dword")]
def poll_check(reg, target, name):
    never = lambda e: False
    t = lambda: [vcmp("v_cmp_eq_u32", "vcc", 1, reg), nop(0), raw(f"s_cmp_eq_u32 vcc_lo, {target}", rd=["vcc"], wr=["scc"])]
    ins = [wait_vm(regs=[reg])] + t() + [branch("s_cbranch_scc1", name + "_ok")]
    ins += with_cond([label(name + "_spin"), raw("s_sleep 2")] + poll_issue(reg) + [Wait(vm=0)] + t() + [branch("s_cbranch_scc0", name + "_spin")], never)
    return ins + [label(name + "_ok")]

sMj, sNj, sB2 = S(66), S(67), S(68)
sRT = [S(96 + i) for i in range(4)]; sKA = S(100); sKC = S(101)
vA, vB, vBc = V(1), V(2), V(3)
def Gx(i):
    return G(i) if i < 58 else A(4 * (i - 58), 4)
def p2_setup(o):
    l = vLane; t0, t1 = vT[1], vT[2]
    ins = [valu("v_lshlrev_b32", t0, 4, l),
           salu("s_lshl_b32", sT0, sW, 17), valu("v_add_u32", vA, sT0, t0),
           salu("s_lshl_b32", sT0, sW, 15), salu("s_lshl_b32", sT1, sMj, 19), salu("s_add_u32", sT1, sT1, sT0), valu("v_add_u32", vB, sT1, t0),
           valu("v_and_b32", t1, 0x37, l), salu("s_and_b32", sT1, sMj, 1), salu("s_lshl_b32", sT1, sT1, 3), valu("v_or_b32", t1, sT1, t1), valu("v_lshlrev_b32", t1, 4, t1),
           salu("s_lshr_b32", sT1, sMj, 1), salu("s_add_u32", sT1, sT1, 16), salu("s_lshl_b32", sT1, sT1, 17), salu("s_add_u32", sT1, sT1, sT0), valu("v_add_u32", vBc, sT1, t1)]
    ins += [salu("s_mul_i32", sT0, sB2, 18 * 131072), salu("s_add_u32", sT0, sT0, WS_O)] + srd(srdWQ, sARG[14], sARG[15], sT0, 18 * 131072)
    return ins
srdO2 = srdWQ
NA = 9
def Cf(ct, rt): return G(5 * ct + rt)
def Bf(pr, k, rt): return Gx(20 + 10 * (pr % 3) + 5 * k + rt)
def Af(pr, k, ct): return Gx(50 + 8 * (pr % NA) + 4 * k + ct)
def a2_loads(o, pr):
    out = []
    for k in range(2):
        for ct in range(4):
            pre = [salu("s_mov_b32", sKA, (2 * pr + k) * 4096)] if ct == 0 else []
            out.append(pre + [buf_load(Af(pr, k, ct), vA, srdWT, sKA, ct * 1024, o.fla)])
    return out
def b2_loads(o, pr):
    out = []
    for rt in range(5):
        for k in range(2):
            off = pr * 2048 + k * 1024
            r = sRT[rt % 2]
            pre = [salu("s_mov_b32", r, (rt * 131072 if rt < 4 else 0) + pr * 2048)] if k == 0 else []
            out.append(pre + [buf_load(Bf(pr, k, rt), vB if rt < 4 else vBc, srdO2, r, k * 1024, o.fld)])
    return out
def p2_main(o):
    ins = []
    for pr in range(2): ins += flat(b2_loads(o, pr))
    for pr in range(16):
        M = [mfma(Cf(ct, rt), Af(pr, k, ct), Bf(pr, k, rt), 0 if (pr == 0 and k == 0) else None) for rt in range(5) for ct in range(4) for k in range(2)]
        groups = (b2_loads(o, pr + 2) if pr + 2 < 16 else [])
        if pr >= 1 and pr - 1 + NA < 16: groups = groups + a2_loads(o, pr - 1 + NA)
        gaps = [[] for _ in range(40)]
        if groups:
            step = 40 / len(groups)
            for j, g in enumerate(groups):
                t = int(j * step)
                gaps[t] = [g[-1]] + gaps[t]
                if len(g) > 1:
                    if t > 0: gaps[t - 1] += g[:-1]
                    else: ins += g[:-1]
        for rt in range(5):
            w = wait_vm(regs=[Bf(pr, 0, rt), Bf(pr, 1, rt)] + ([Af(pr, k, c) for k in range(2) for c in range(4)] if rt == 0 else []))
            if rt == 0: ins.append(w)
            else: gaps[8 * rt - 1].append(w)
        for m, g in zip(M, gaps): ins += [m] + g
        ins += stamp(o, f"p{pr}")
    return ins
def p2_reduce(o):
    l = vLane; t0, t1, t2 = vT[1], vT[2], vT[3]
    ins = [valu("v_lshlrev_b32", t0, 4, l), salu("s_mul_i32", sT0, sW, 20480), valu("v_add_u32", t1, sT0, t0)]
    for rt in range(5):
        for ct in range(4): ins += [ds_write("ds_write_b128", t1, Cf(ct, rt), (5 * ct + rt) * 1024)]
    ins += [valu("v_bfe_u32", t0, l, 1, 2), valu("v_mul_u32_u24", t0, 5120, t0), valu("v_and_b32", t1, 1, l), valu("v_lshl_add_u32", t0, t1, 9, t0),
            valu("v_lshrrev_b32", t2, 3, l), valu("v_lshl_add_u32", t0, t2, 4, t0),
            salu("s_lshl_b32", sT0, sW, 10), valu("v_add_u32", V(4), sT0, t0)]
    ins += [salu("s_mul_i32", sT0, sB2, 294912), salu("s_lshl_b32", sT1, sNj, 7), salu("s_add_u32", sT0, sT0, sT1), salu("s_sub_u32", sT1, 8 * 294912, sT0)] + srd(srdOUT, sARG[10], sARG[11], sT0, sT1)
    ins += [valu("v_and_b32", t1, 7, l), valu("v_lshlrev_b32", t1, 4, t1), valu("v_lshl_add_u32", t1, t2, 10, t1),
            salu("s_lshl_b32", sT0, sMj, 16), salu("s_lshl_b32", sT1, sW, 14), salu("s_add_u32", sT0, sT0, sT1),
            salu("s_lshl_b32", sT1, sMj, 13), salu("s_add_u32", sT1, sT1, 256 * 1024), salu("s_add_u32", sT2, sT0, 8192),
            valu("v_add_u32", t0, 4096, t0)]
    ins += [Wait(lgkm=0), barrier()] + stamp(o, "red")
    def rd(addr, off, base):
        regs = [[G(base + 2 * wv + h) for h in range(2)] for wv in range(4)]
        return regs, [ds_read("ds_read_b128", regs[wv][h], addr, wv * 20480 + off + h * 256) for wv in range(4) for h in range(2)]
    def fin(regs, soff):
        out = []
        for wv in range(1, 4):
            out.append(wait_lgkm(regs[wv][0], regs[wv][1], regs[0][0], regs[0][1]))
            for h in range(2):
                for r in range(0, 4, 2): out.append(valu("v_pk_add_f32", regs[0][h][r:r + 2], regs[0][h][r:r + 2], regs[wv][h][r:r + 2]))
        X, Y = regs[0]
        return out + [valu("v_cvt_pk_bf16_f32", X[0], X[0], X[1]), valu("v_cvt_pk_bf16_f32", X[1], X[2], X[3]),
                valu("v_cvt_pk_bf16_f32", X[2], Y[0], Y[1]), valu("v_cvt_pk_bf16_f32", X[3], Y[2], Y[3]), buf_store(X, t1, srdOUT, soff, 0)]
    r0, l0 = rd(V(4), 0, 0); r1, l1 = rd(V(4), 128, 8); r2, l2 = rd(t0, 0, 16)
    ins += l0 + l1 + fin(r0, sT0) + fin(r1, sT2)
    ins += [scmp("s_cmp_lg_u32", sW, 0), branch("s_cbranch_scc1", "L_done")] + l2 + fin(r2, sT1) + [label("L_done")]
    return ins

def cond_block(cnt, name, k, ins):
    return [scmp("s_cmp_eq_u32", sCnt, cnt), branch("s_cbranch_scc0", name)] + with_cond(ins, lambda e: e["k"] == k) + [label(name)]

vTch = V(247)
def wot_touch(o, lst):
    ins = []
    for i in lst:
        ins += [salu("s_lshl_b32", sT0, sMj, 13), salu("s_add_u32", sT0, sT0, i * 32768), buf_load(vT[7], vTch, srdWT, sT0, 0, o.fla, op="buffer_load_dword", tag=("WTT", i))]
    return ins
def o_touch(o):
    l = vLane; t0, t1 = vT[1], vT[2]
    ins = [valu("v_lshrrev_b32", t0, 4, l), valu("v_lshlrev_b32", t0, 17, t0), valu("v_and_b32", t1, 15, l), valu("v_lshl_add_u32", t0, t1, 7, t0),
           salu("s_lshl_b32", sT0, sW, 15), salu("s_lshl_b32", sT1, sMj, 19), salu("s_add_u32", sT1, sT1, sT0), salu("s_lshl_b32", sT2, sNj, 11), salu("s_add_u32", sT1, sT1, sT2),
           buf_load(vT[7], t0, srdO2, sT1, 0, o.fld, op="buffer_load_dword"), salu("s_add_u32", sT1, sT1, 16384),
           buf_load(vT[7], t0, srdO2, sT1, 0, o.fld, op="buffer_load_dword"),
           valu("v_bfe_u32", t0, l, 4, 1), valu("v_lshlrev_b32", t0, 14, t0), valu("v_lshl_add_u32", t0, t1, 7, t0),
           salu("s_lshr_b32", sT1, sMj, 1), salu("s_add_u32", sT1, sT1, 16), salu("s_lshl_b32", sT1, sT1, 17), salu("s_add_u32", sT1, sT1, sT0), salu("s_add_u32", sT1, sT1, sT2),
           buf_load(vT[7], t0, srdO2, sT1, 0, o.fld, op="buffer_load_dword")]
    return ins

def kernel_F(o):
    p = Prog("F")
    p.seg(head_A(o)); p.seg(startup_A(o))
    p.seg(q_stage(o, "loop"), envs=[{"s": s} for s in range(6)], fix=False)
    p.seg(stamp(o, "q6") + q_stage(o, "s6"), envs=[{"s": 6}], fix=False)
    p.seg(stamp(o, "q7") + q_stage(o, "s7") + wot_dma(o), envs=[{"s": 7}])
    p.seg(stamp(o, "qend") + [valu("v_mov_b32", vOne, 1), valu("v_lshlrev_b32", vL4, 7, vLane)] + dbg_srd() + poll_issue(vT[0]) + q_epilogue(o))
    p.seg([salu("s_mov_b32", sKoff, 4 * 16384), salu("s_mov_b32", sVoff, 2 * 16384), salu("s_mov_b32", sRing, sW4k), salu("s_mov_b32", sCnt, 7)]
          + [wait_lgkm(*[Kf(0, s) for s in range(4)])] + stamp(o, "qepi"))
    T = Tmpl(o)
    ids = [salu("s_and_b32", sB2, S(2), 7), salu("s_lshr_b32", sMj, S(2), 3), salu("s_and_b32", sMj, sMj, 3), salu("s_lshr_b32", sNj, S(2), 5),
           valu("v_lshlrev_b32", vTch, 7, vLane), salu("s_lshl_b32", sT0, sW, 17), valu("v_add_u32", vTch, sT0, vTch)]
    p.seg(T.emit(0, 0, 0, 74) + stamp(o, "b0") + T.emit(0, 74, 0, 100) + wot_finish(o) + poll_check(vT[0], 1, "L_z") + flag_srd(prod_idx(256)) + ids + T.emit(0, 100, 1, 70))
    body = [label("L_aloop")] + T.emit(1, 70, 3, 70)
    i3 = [j for j, x in enumerate(body) if x.kind == "barrier"][0]
    chkw = wait_vm(tags=[("WTST", 0)]); chkw.kw["cond"] = lambda e: e["k"] == 1; chkw.kw["virtual"] = True
    body.insert(i3, chkw)
    body += [salu("s_lshl_b32", sT0, sW, 4), salu("s_add_u32", sT0, sT0, sCnt), scmp("s_cmp_eq_u32", sT0, 6), branch("s_cbranch_scc0", "L_c1")]
    body += with_cond([flag_store()], lambda e: False) + [label("L_c1")]
    wsrd = flag_srd(cons_idx(sNj, 256), 1024)
    wtsrd = [salu("s_lshl_b32", sT0, sNj, 19), salu("s_add_u32", sT0, sT0, WS_WOT)] + srd(srdWT, sARG[14], sARG[15], sT0, 524288)
    kt = o.ktouch
    body += cond_block(7 - (kt - 1), "L_c2", kt - 1, wsrd + wtsrd + poll_issue(vT[0]))
    chk = poll_check(vT[0], 255, "L_wt")
    spin = [i for i in chk if "cond" in i.kw]
    blk = cond_block(7 - kt, "L_c3", kt, chk + wot_touch(o, range(o.ntouch)))
    with_cond(spin, lambda e: False)
    body += blk
    body += [salu("s_sub_u32", sCnt, sCnt, 1), scmp("s_cmp_lg_u32", sCnt, 0), branch("s_cbranch_scc1", "L_aloop")]
    p.seg(stamp(o, "loop"))
    p.seg(body, envs=[{"k": k} for k in range(7)], fix=False)
    p.seg(stamp(o, "loopend") + T.emit(15, 70, 17, 0))
    p.seg(stamp(o, "aend") + o_epilogue(o) + stamp(o, "ost") + p2_setup(o))
    ins = []
    for pr in range(o.apre): ins += flat(a2_loads(o, pr))
    ins += flag_srd(prod_idx(0)) + [wait_vm(tags=[("OST", 0)]), barrier(), scmp("s_cmp_lg_u32", sW, 0), branch("s_cbranch_scc1", "L_noflag")]
    ins += with_cond([flag_store()], lambda e: False) + [label("L_noflag")]
    ins += stamp(o, "flag")
    if o.ntouch > 0: ins += wot_touch(o, range(o.ntouch, 4))
    for pr in range(o.apre, NA):
        if pr == 7: ins += [Wait(vm=40)]
        ins += flat(a2_loads(o, pr))
    ins += flag_srd(cons_idx(sB2, 0), 1024) + poll_issue(vT[0]) + poll_check(vT[0], 255, "L_ot")
    if o.otouch: ins += o_touch(o)
    p.seg(ins + stamp(o, "poll"))
    p.seg(p2_main(o))
    p.seg(p2_reduce(o) + stamp(o, "end") + stamp_store(o, 8) + [label("L_exitA"), raw("s_endpgm")])
    p.finalize()
    assert chkw.rvm is None, "woT stores not retired before B_3"
    c, nm = est_cycles([i for i in body if "cond" not in i.kw])
    print(f"attention loop body: est {c} cycles for {nm} mfma -> {c/nm*2:.2f} cyc/slot, {len(body)} instrs")
    return p

KD = """.section .rodata,"a"
.p2align 6
.amdhsa_kernel {name}
  .amdhsa_next_free_vgpr 512
  .amdhsa_next_free_sgpr 102
  .amdhsa_accum_offset 256
  .amdhsa_group_segment_fixed_size 0
  .amdhsa_kernarg_size 64
  .amdhsa_user_sgpr_count 2
  .amdhsa_user_sgpr_kernarg_segment_ptr 1
  .amdhsa_system_sgpr_workgroup_id_x 1
.end_amdhsa_kernel
"""
def build(o):
    o.dbg_off = 0
    if o.nowait: NOVMCHECK[0] = True
    if o.fused:
        o.fst = o.fst or "sc1"; o.fld = o.fld or "sc1"; o.fost = o.fst if o.fost is None else o.fost; o.fla = o.fld if o.fla is None else o.fla
        p = kernel_F(o); nm = NAME + "_kernel"
        s = "; generated by gen/gen.py\n; @launch grid=(256,1,1) block=(256,1,1) lds=163840\n"
        s += '.amdgcn_target "amdgcn-amd-amdhsa--gfx950"\n.text\n'
        s += f".globl {nm}\n.p2align 8\n.type {nm},@function\n{nm}:\n" + p.text() + "\n" + KD.format(name=nm)
        return s
    a = kernel_A(o)
    o.dbg_off = 65536
    b = kernel_B(o)
    s = "; generated by gen/gen.py\n"
    s += "; @launch kernel=attn_kernel grid=(256,1,1) block=(256,1,1) lds=163840\n"
    s += "; @launch kernel=oproj_kernel grid=(256,1,1) block=(256,1,1) lds=81920\n"
    s += '.amdgcn_target "amdgcn-amd-amdhsa--gfx950"\n.text\n'
    for nm, p in (("attn_kernel", a), ("oproj_kernel", b)):
        s += f".globl {nm}\n.p2align 8\n.type {nm},@function\n{nm}:\n" + p.text() + "\n"
    for nm in ("attn_kernel", "oproj_kernel"): s += KD.format(name=nm)
    return s

def opts(argv=None):
    ap = argparse.ArgumentParser()
    ap.add_argument("-o", default="cdna_kernels/" + NAME + ".s")
    ap.add_argument("--map", default="4x8")
    ap.add_argument("--fx", default=""); ap.add_argument("--fw", default=""); ap.add_argument("--fkv", default="nt")
    ap.add_argument("--fwo", default=""); ap.add_argument("--fst", default=""); ap.add_argument("--fld", default="")
    ap.add_argument("--fost", default=None); ap.add_argument("--fla", default=None)
    ap.add_argument("--dstep", type=int, default=18); ap.add_argument("--nowait", type=int, default=0); ap.add_argument("--samekv", type=int, default=0)
    ap.add_argument("--qtouch", type=int, default=0); ap.add_argument("--otouch", type=int, default=0); ap.add_argument("--ktouch", type=int, default=5)
    ap.add_argument("--ntouch", type=int, default=0); ap.add_argument("--apre", type=int, default=0)
    ap.add_argument("--prof", default="main")
    ap.add_argument("--rot", type=int, default=1)
    ap.add_argument("--nodma", type=int, default=0)
    ap.add_argument("--lag", type=int, default=8); ap.add_argument("--backlog", type=int, default=2)
    ap.add_argument("--stamps", type=int, default=0); ap.add_argument("--fused", type=int, default=1)
    return ap.parse_args(argv)

if __name__ == "__main__":
    o = opts()
    s = build(o)
    open(o.o, "w").write(s)
    print("wrote", o.o, len(s), "bytes")
```

```python
import re

def R(kind, lo, n=1):
    return [f"{kind}{lo+i}" for i in range(n)]

def rng(kind, lo, n):
    return f"{kind}{lo}" if n == 1 else f"{kind}[{lo}:{lo+n-1}]"

class Reg:
    def __init__(self, kind, lo, n=1):
        self.kind, self.lo, self.n = kind, lo, n
    def __str__(self): return rng(self.kind, self.lo, self.n)
    def regs(self): return R(self.kind, self.lo, self.n)
    def __getitem__(self, i):
        if isinstance(i, slice):
            a = i.start or 0; b = i.stop if i.stop is not None else self.n
            assert 0 <= a < b <= self.n
            return Reg(self.kind, self.lo + a, b - a)
        assert 0 <= i < self.n
        return Reg(self.kind, self.lo + i, 1)
def V(lo, n=1): return Reg("v", lo, n)
def A(lo, n=1): return Reg("a", lo, n)
def S(lo, n=1): return Reg("s", lo, n)

def regs_of(x):
    if isinstance(x, Reg): return x.regs()
    if isinstance(x, str) and x in ("vcc", "exec", "m0", "scc"): return [x]
    return []

class I:
    def __init__(self, text, kind, rd=(), wr=(), tag=None, cost=None, **kw):
        self.text, self.kind = text, kind
        self.rd = [r for x in rd for r in regs_of(x)]
        self.wr = [r for x in wr for r in regs_of(x)]
        self.tag = tag
        self.kw = kw
    def __repr__(self): return self.text

def fmt(x):
    if isinstance(x, float):
        return repr(x)
    if isinstance(x, int):
        return str(x) if -16 <= x <= 64 else hex(x & 0xffffffff)
    return str(x)

def mfma(d, a, b, c=None):
    c = d if c is None else c
    return I(f"v_mfma_f32_16x16x32_bf16 {d}, {a}, {b}, {fmt(c)}", "mfma", rd=[a, b, c], wr=[d], srcc=regs_of(c), ab=regs_of(a)+regs_of(b))
def valu(op, d, *src, extra="", rdd=False, wr2=()):
    kind = "trans" if op.split("_")[1] in ("exp", "rcp", "log", "rsq", "sqrt") else "valu"
    rd = list(src) + ([d] if rdd else []) + ["exec"]
    return I(f"{op} {d}, " + ", ".join(fmt(s) for s in src) + extra, kind, rd=rd, wr=[d] + list(wr2), op=op)
def vcmp(op, d, a, b):
    return I(f"{op} {d}, {fmt(a)}, {fmt(b)}", "valu", rd=[a, b, "exec"], wr=[d], op=op)
def cndmask(d, f, t, m="vcc"):
    return I(f"v_cndmask_b32 {d}, {fmt(f)}, {fmt(t)}, {m}", "valu", rd=[f, t, m, "exec"], wr=[d], op="v_cndmask_b32", maskrd=regs_of(m))
def vswap(op, a, b):
    return I(f"{op} {a}, {b}", "valu", rd=[a, b, "exec"], wr=[a, b], op=op)
def rfl(d, s):
    return I(f"v_readfirstlane_b32 {d}, {s}", "valu", rd=[s, "exec"], wr=[d], op="v_readfirstlane_b32")
def salu(op, d, *src, scc=True):
    wr = [d] + (["scc"] if scc and op not in ("s_mov_b32", "s_mov_b64", "s_mul_i32", "s_cselect_b32", "s_movk_i32") else [])
    rd = list(src) + (["scc"] if op in ("s_addc_u32", "s_subb_u32", "s_cselect_b32", "s_cselect_b64") else [])
    return I(f"{op} {d}, " + ", ".join(fmt(s) for s in src), "salu", rd=rd, wr=wr, op=op)
def scmp(op, a, b):
    return I(f"{op} {fmt(a)}, {fmt(b)}", "salu", rd=[a, b], wr=["scc"], op=op)
def branch(op, label):
    return I(f"{op} {label}", "branch", rd=["scc"] if "scc" in op else (["vcc"] if "vcc" in op else []), op=op, target=label)
def label(name): return I(f"{name}:", "label", name=name)
def ds_read(op, d, addr, off=0):
    assert 0 <= off < 65536, off
    return I(f"{op} {d}, {addr}" + (f" offset:{off}" if off else ""), "ds_r", rd=[addr, "exec"], wr=[d])
def ds_write(op, addr, data, off=0):
    assert 0 <= off < 65536, off
    return I(f"{op} {addr}, {data}" + (f" offset:{off}" if off else ""), "ds_w", rd=[addr, data, "exec"])
def buf_load(d, voff, srd, soff=0, off=0, flags="", op="buffer_load_dwordx4", tag=None):
    assert 0 <= off < 4096
    return I(f"{op} {d}, {voff}, {srd}, {fmt(soff)} offen" + (f" offset:{off}" if off else "") + (" " + flags if flags else ""), "vm_ld", rd=[voff, srd, soff, "exec"], wr=[d], tag=tag)
def buf_dma(voff, srd, soff=0, off=0, flags="", tag=None):
    assert 0 <= off < 4096
    return I(f"buffer_load_dwordx4 {voff}, {srd}, {fmt(soff)} offen" + (f" offset:{off}" if off else "") + (" " + flags if flags else "") + " lds", "vm_dma", rd=[voff, srd, soff, "m0", "exec"], tag=tag)
def buf_store(data, voff, srd, soff=0, off=0, flags="", op="buffer_store_dwordx4", tag=None):
    assert 0 <= off < 4096
    return I(f"{op} {data}, {voff}, {srd}, {fmt(soff)} offen" + (f" offset:{off}" if off else "") + (" " + flags if flags else ""), "vm_st", rd=[data, voff, srd, soff, "exec"], tag=tag, data=regs_of(data))
def smem(text, wr, rd=()):
    return I(text, "smem", rd=rd, wr=wr)
def nop(n=0): return I(f"s_nop {n}", "nop", n=n)
def barrier(): return I("s_barrier", "barrier")
def raw(text, kind="salu", rd=(), wr=()): return I(text, kind, rd=rd, wr=wr)
class Wait(I):
    def __init__(self, vm=None, lgkm=None, regs=(), tags=()):
        super().__init__("s_waitcnt", "wait")
        self.vm, self.lgkm = vm, lgkm
        self.regs = [r for x in regs for r in regs_of(x)]
        self.tags = tags
        self.rvm = vm if isinstance(vm, int) else None
        self.rlg = lgkm if isinstance(lgkm, int) else None
    def render(self):
        p = []
        if self.vm is not None:
            p.append(f"vmcnt({min(63, self.rvm if self.rvm is not None else 63)})")
        if self.lgkm is not None:
            p.append(f"lgkmcnt({min(15, self.rlg if self.rlg is not None else 15)})")
        return "s_waitcnt " + " ".join(p)

def wait_lgkm(*regs): return Wait(lgkm="auto", regs=regs)
def wait_vm(regs=(), tags=()): return Wait(vm="auto", regs=regs, tags=tags)

def render(ins, ool=False):
    out = []
    for i in ins:
        if i.kw.get("virtual"): continue
        if bool(i.kw.get("ool")) != ool: continue
        t = i.render() if isinstance(i, Wait) else i.text
        out.append(t if i.kind == "label" else "  " + t)
    return "\n".join(out)

def ev(x, env):
    return x(env) if callable(x) else x

def resolve_waits(trace):
    for _ in range(2):
        lg, vm = [], []
        for ins, env in trace:
            k = ins.kind
            if k in ("ds_r", "ds_w"): lg.append((ins.wr, None))
            elif k == "smem": lg.append((ins.wr, "smem"))
            elif k in ("vm_ld", "vm_dma", "vm_st"): vm.append((ins.wr, ev(ins.tag, env)))
            elif k == "wait":
                if ins.lgkm == "auto":
                    idx = [j for j, (r, t) in enumerate(lg) if set(r) & set(ins.regs)]
                    if idx:
                        n = len(lg) - 1 - max(idx)
                        if any(t == "smem" for r, t in lg): n = 0
                        ins.rlg = n if ins.rlg is None else min(ins.rlg, n)
                if ins.vm == "auto":
                    tg = [ev(t, env) for t in ins.tags]
                    idx = [j for j, (r, t) in enumerate(vm) if (set(r) & set(ins.regs)) or (t is not None and t in tg)]
                    if idx:
                        n = len(vm) - 1 - max(idx)
                        ins.rvm = n if ins.rvm is None else min(ins.rvm, n)
                if ins.lgkm is not None:
                    n = min(15, ins.rlg if ins.rlg is not None else 15)
                    if n == 0 or not any(t == "smem" for r, t in lg):
                        lg = lg[len(lg) - n:] if n < len(lg) else lg
                if ins.vm is not None:
                    n = min(63, ins.rvm if ins.rvm is not None else 63)
                    vm = vm[len(vm) - n:] if n < len(vm) else vm

NOVMCHECK = [False]
def check(trace, name=""):
    probs = []
    lg, vm = [], []
    hist = []
    pos = 0
    def need(cond_fn, dist, what, ins):
        for h, p in reversed(hist[-40:]):
            if pos - p - 1 >= dist and h.kind != "nop":
                if pos - p - 1 >= 24: break
            if cond_fn(h) and (pos - p - 1) < dist:
                probs.append((f"{name}: hazard {what}: '{h.text}' -> '{ins.text}' dist {pos-p-1} < {dist}", ins, dist - (pos-p-1)))
    for ins, env in trace:
        k = ins.kind
        if k == "label": continue
        rd, wr = set(ins.rd), set(ins.wr)
        for q, nm in ((lg, "lgkm"), (vm, "vm")):
            for r, t in q:
                if set(r) & (rd | wr):
                    if k in ("ds_r",) and nm == "lgkm" and not (set(r) & rd): continue
                    if k == "vm_ld" and nm == "vm" and not (set(r) & rd): continue
                    probs.append((f"{name}: missing {nm} wait for {sorted(set(r) & (rd|wr))[:2]} at '{ins.text}'", ins, None))
        vr = {r for r in rd if r[0] in "va" and r != "vcc"}
        vw = {r for r in wr if r[0] in "va" and r != "vcc"}
        isv = lambda h: h.kind in ("valu", "trans")
        if k == "mfma":
            need(lambda h: isv(h) and set(h.wr) & vr, 2, "valu->mfma", ins)
            need(lambda h: h.kind == "mfma" and set(h.wr) & set(ins.kw["ab"]), 8, "mfma->mfma AB", ins)
            need(lambda h: h.kind == "mfma" and set(h.wr) & set(ins.kw["srcc"]) and set(h.wr) != set(ins.kw["srcc"]), 6, "mfma->mfma C partial", ins)
            need(lambda h: isv(h) and "exec" in h.wr, 4, "exec->mfma", ins)
        if k in ("valu", "trans"):
            need(lambda h: h.kind == "mfma" and set(h.wr) & (vr | vw), 8, "mfma->valu", ins)
            need(lambda h: h.kind == "mfma" and set(h.kw["srcc"]) & vw, 3, "mfma srcC WAR", ins)
            if k == "valu": need(lambda h: h.kind == "trans" and set(h.wr) & vr, 1, "trans->valu", ins)
            need(lambda h: h.kind == "vm_st" and set(h.kw.get("data", [])) & vw, 2, "store data WAR", ins)
            sr = {r for r in rd if r[0] == "s" and r != "scc"} | set(ins.kw.get("maskrd", []))
            need(lambda h: isv(h) and set(h.wr) & sr, 2, "valu sgpr->valu", ins)
            op = ins.kw.get("op", "")
            if "permlane" in op: need(lambda h: isv(h) and set(h.wr) & vr, 2, "valu->permlane", ins)
            if "readfirstlane" in op or "readlane" in op: need(lambda h: isv(h) and set(h.wr) & vr, 1, "valu->readlane", ins)
        if k in ("ds_r", "ds_w", "vm_ld", "vm_dma", "vm_st"):
            need(lambda h: h.kind == "mfma" and set(h.wr) & (vr | vw), 8, "mfma->mem", ins)
        if k in ("ds_r", "vm_ld"):
            need(lambda h: h.kind == "vm_st" and set(h.kw.get("data", [])) & vw, 1, "store data WAR", ins)
        if k in ("vm_ld", "vm_dma", "vm_st"):
            sr = {r for r in rd if r[0] == "s"}
            need(lambda h: isv(h) and set(h.wr) & sr, 5, "valu sgpr->vmem", ins)
        if k == "vm_dma":
            need(lambda h: h.kind == "salu" and "m0" in h.wr, 1, "m0->dma", ins)
        if k == "salu" or k == "branch":
            need(lambda h: isv(h) and set(h.wr) & {r for r in rd if r[0] == "s" or r == "vcc"}, 1, "valu sgpr->salu(pad)", ins)
        if k in ("ds_r", "ds_w"): lg.append((ins.wr, None))
        elif k == "smem": lg.append((ins.wr, "smem"))
        elif k in ("vm_ld", "vm_dma", "vm_st"): vm.append((ins.wr, ev(ins.tag, env)))
        elif k == "wait":
            if ins.lgkm is not None:
                n = min(15, ins.rlg if ins.rlg is not None else 15)
                if n == 0 or not any(t == "smem" for r, t in lg):
                    lg = lg[len(lg) - n:] if n < len(lg) else lg
            if ins.vm is not None:
                n = min(63, ins.rvm if ins.rvm is not None else 63)
                vm = vm[len(vm) - n:] if n < len(vm) else vm
                tg = [ev(t, env) for t in ins.tags]
                for r, t in vm:
                    if t is not None and t in tg: probs.append((f"{name}: vm tag {t} not covered", ins, None))
        if len(vm) > 63 and not NOVMCHECK[0]: probs.append((f"{name}: vmcnt overflow at '{ins.text}'", ins, None))
        hist.append((ins, pos))
        pos += (ins.kw["n"] + 1) if k == "nop" else 1
    return probs

def est_cycles(ins):
    t = 0; prev = None; mf_ready = 0; n_m = 0
    for i in ins:
        k = i.kind
        if k == "label": continue
        sh = prev is not None and prev.kind == "mfma"
        if k == "mfma":
            t = max(t, mf_ready - 4); mf_ready = max(t, mf_ready) + 16; t += 4; n_m += 1
        elif k in ("valu", "trans"):
            t += (4 if sh else 0) + (8 if k == "trans" else 4)
        elif k in ("ds_r", "ds_w"): t += 8 if sh else 12
        elif k.startswith("vm"): t += 20 if sh else 24
        elif k == "nop": t += 4 * (i.kw["n"] + 1)
        elif k == "barrier": t += 50
        else: t += 4
        prev = i
    return t, n_m


class Prog:
    def __init__(self, name):
        self.name = name; self.segs = []
    def seg(self, ins, envs=None, fix=True):
        self.segs.append([list(ins), envs or [{}], fix]); return self.segs[-1][0]
    def trace(self):
        t = []
        for ins, envs, _ in self.segs:
            for e in envs: t += [(i, e) for i in ins if "cond" not in i.kw or i.kw["cond"](e)]
        return t
    def finalize(self, verbose=True):
        nfix = 0
        for ins, envs, _ in self.segs:
            if len(envs) > 1:
                assert ins[-1].kind == "branch" and ins[0].kind == "label" and ins[-1].kw["target"] == ins[0].kw["name"]
                cmpi = [i for i in ins if "scc" in i.wr and not i.kw.get("ool")][-1]
                assert len([i for i in ins if i.kind == "barrier" and "cond" in i.kw]) == 0
                assert cmpi.kw.get("op") == "s_cmp_lg_u32", cmpi
                cnt = cmpi.rd[0]
                w = [i for i in ins if cnt in i.wr]
                assert len(w) == 1 and w[0].text.startswith(f"s_sub_u32 {cnt}, {cnt}, 1"), (cnt, w)
                init = None
                for ins2, e2, _ in self.segs:
                    if ins2 is ins: break
                    for i in ins2:
                        if cnt in i.wr: init = i
                assert init.text == f"s_mov_b32 {cnt}, {len(envs)}", (init, len(envs))
        for it in range(2000):
            tr = self.trace()
            for i, _ in tr:
                if isinstance(i, Wait):
                    if i.vm == "auto": i.rvm = None
                    if i.lgkm == "auto": i.rlg = None
            resolve_waits(tr)
            probs = check(tr, self.name)
            fixable = [p for p in probs if p[2] is not None]
            if not fixable: break
            done = set()
            progress = False
            for msg, ins, d in fixable:
                if id(ins) in done: continue
                for seg, envs, fix in self.segs:
                    for j, x in enumerate(seg):
                        if x is ins:
                            d = max(p[2] for p in fixable if p[1] is ins)
                            if not fix and verbose: print("NOTE fixing hazard in tuned segment:", msg)
                            nn = nop(d - 1)
                            for key in ("cond", "ool"):
                                if key in ins.kw: nn.kw[key] = ins.kw[key]
                            seg.insert(j, nn); nfix += 1; progress = True
                            break
                done.add(id(ins))
                break
            if not progress: break
        rest = [p[0] for p in probs]
        if verbose: print(f"{self.name}: inserted {nfix} nops; remaining problems: {len(rest)}")
        for m in rest[:40]: print("   PROBLEM", m)
        assert not rest
    def text(self):
        t = "\n".join(render(ins) for ins, _, _ in self.segs)
        o = "\n".join(x for x in (render(ins, True) for ins, _, _ in self.segs) if x)
        return t + ("\n" + o if o else "")

def atomic_add(data, voff, srd_, soff=0, off=0, flags="sc1", tag=None):
    return I(f"buffer_atomic_add {data}, {voff}, {srd_}, {fmt(soff)} offen" + (f" offset:{off}" if off else "") + (" " + flags if flags else ""), "vm_st", rd=[data, voff, srd_, soff, "exec"], tag=tag, data=[])
def with_cond(ins, cond):
    for i in ins: i.kw["cond"] = cond
    return ins

def out_of_line(ins):
    for i in ins: i.kw["ool"] = True
    return ins
```

```python
import sys, math, argparse, struct
from asmlib import *

NAME = "standalone__mha_block_cached__near_ridge"
WS_O = 0
WS_WOT = 0x1400000
WS_FLG = 0x1900000
WS_DBG = 0x2000000
QBUF = 53248
SCALE = math.log2(math.e) / math.sqrt(128.0)
def f2u(x): return struct.unpack("<I", struct.pack("<f", x))[0]
never = lambda e: False

sW = S(3)
srdX, srdWQ, srdK, srdV, srdO, srdWO, srdWT, srdOUT, srdDBG = [S(4 + 4 * i, 4) for i in range(9)]
srdF = srdX; srdO2 = srdWQ
sB, sH, sT0, sT1, sT2, sT3, sT4, sT5 = [S(40 + i) for i in range(8)]
sARG = S(48, 16)
sC = S(64, 2)
sQx, sQw, sBufD, sBufR, sDelta, sCnt = [S(66 + i) for i in range(6)]
sMj, sNj, sLocal, sXcc, sB2 = S(66), S(67), S(68), S(69), S(70)
sKoff, sVoff, sRing, sW4k = [S(72 + i) for i in range(4)]
sExecHi = S(76, 2); sTm = S(78, 2); sStamp = S(80, 16)
sPW, sPC = S(96), S(97); vPW = V(15)
sRT = [S(96 + i) for i in range(4)]; sKA = S(100); sKB = S(101)
sRotA, sRotB, sPB = S(72), S(73), S(74)
vL128 = V(0)
vKa = [V(1), V(2)]
vVa = [[V(3), V(4)], [V(5), V(6)]]
vDA, vDB = V(7), V(8)
vL = [V(9 + i) for i in range(5)]
vLane = V(14); vT = [V(15)] + [V(249 + i) for i in range(7)]
vOne = V(248)
vXr, vXc, vWx, vWy, vXA, vXB, vXC, vWA, vWB = [V(240 + i) for i in range(9)]
def G(i): return V(16 + 4 * i, 4)
def acc(q, dt): return G(8 * q + dt)
def Qf(q, s): return acc(q, 2 * s)
_pool = [G(i) for i in range(40, 56)] + [acc(q, 2 * s + 1) for q in range(5) for s in range(4)]
def St(j): return _pool[j]
def Pf(par, f): return _pool[18 + 9 * par + f]
def Of(q, dt): return A(4 * (8 * q + dt), 4)
def Kf(b, s): return A(160 + 16 * b + 4 * s, 4)
def Vf(dt, c): return A(192 + 8 * (dt % 4) + 4 * c, 4)
def Bx(q, ks): return G(40 + 2 * q + ks)
def Aw(dt, ks): return A(192 + 8 * (dt % 4) + 4 * ks, 4)

def srd(dst, base_lo, base_hi, off, size):
    return [salu("s_add_u32", dst[0], base_lo, off), salu("s_addc_u32", dst[1], base_hi, 0),
            salu("s_mov_b32", dst[2], size), salu("s_mov_b32", dst[3], 0x20000)]
def flat(groups): return [nop(0) if x is None else x for g in groups for x in g]

PROF = {"main": ["data", "qend", "loop", "aend", "flag", "poll", "end"],
        "p2": ["poll", "p3", "p7", "p11", "p15", "red", "end"],
        "q": ["data", "q6", "q7", "qend", "qepi", "b0", "loop"],
        "tail2": ["aend", "ost", "flag", "arest", "poll", "p7", "end"],
        "tail": ["loopend", "b15", "aend", "ost", "flag", "poll", "end"]}
def stamp(o, name):
    if not o.stamps or name not in PROF[o.prof]: return []
    idx = PROF[o.prof].index(name) + 1
    return [smem(f"s_memtime {sTm}", [sTm]), smem(f"s_memrealtime {sStamp[2*idx:2*idx+2]}", [sStamp[2*idx:2*idx+2]]), Wait(lgkm=0), salu("s_mov_b32", sStamp[2*idx+1], sTm[0])]
def stamp_store(o, n=8):
    if not o.stamps: return []
    if o.stamps == 2:
        ins = [salu("s_lshl_b32", sT0, sW, 8), salu("s_add_u32", sT0, sT0, S(2)), scmp("s_cmp_ge_u32", sT0, 2), branch("s_cbranch_scc1", "L_nost"),
               salu("s_mul_i32", sT0, sT0, 28), salu("s_add_u32", sT0, sT0, 8)] + srd(srdDBG, sARG[12], sARG[13], sT0, 28) + [valu("v_mov_b32", vT[1], 0)]
        for k in range(1, n):
            ins += [salu("s_sub_u32", sT1, sStamp[2 * k], sStamp[0]), valu("v_mov_b32", vT[2], sT1), nop(1), buf_store(vT[2], vT[1], srdDBG, 0, 4 * (k - 1), op="buffer_store_dword"), nop(1)]
        return ins + [label("L_nost")]
    ins = [salu("s_lshl_b32", sT0, S(2), 2), salu("s_add_u32", sT0, sT0, sW), salu("s_lshl_b32", sT0, sT0, 6), salu("s_add_u32", sT0, sT0, WS_DBG)]
    ins += srd(srdDBG, sARG[14], sARG[15], sT0, 64) + [valu("v_mov_b32", vT[1], 0)]
    for k in range(n):
        ins += [valu("v_mov_b32", vT[2], sStamp[2 * k]), nop(1), buf_store(vT[2], vT[1], srdDBG, 0, 4 * k, op="buffer_store_dword"), nop(1)]
        if k == 0: ins += [raw(f"s_getreg_b32 {sStamp[1]}, hwreg(HW_REG_XCC_ID, 0, 4)", wr=[sStamp[1]])]
        ins += [valu("v_mov_b32", vT[2], sStamp[2 * k + 1]), nop(1), buf_store(vT[2], vT[1], srdDBG, 0, 32 + 4 * k, op="buffer_store_dword"), nop(1)]
    return ins

def flag_srd(idx_instrs, size=4):
    return idx_instrs + [salu("s_lshl_b32", sT0, sT0, 7), salu("s_add_u32", sT0, sT0, WS_FLG)] + srd(srdF, sARG[14], sARG[15], sT0, size)
def prod_idx(base):
    return [salu("s_lshl_b32", sT0, sB, 5), salu("s_add_u32", sT0, sT0, sH)] + ([salu("s_add_u32", sT0, sT0, base)] if base else [])
def flag_store(data, fl="sc1"): return buf_store(data, vL128, srdF, 0, 0, fl, op="buffer_store_dword")
def poll_issue(reg, voff=None): return [buf_load(reg, voff or vL128, srdF, 0, 0, "sc1", op="buffer_load_dword")]
def poll_check(reg, target, name, voff=None):
    def t():
        c = raw("s_cmp_eq_u64 vcc, exec", rd=["vcc"], wr=["scc"]) if target == -1 else raw(f"s_cmp_eq_u32 vcc_lo, {target}", rd=["vcc"], wr=["scc"])
        return [vcmp("v_cmp_ne_u32", "vcc", 0, reg), nop(0), c]
    ins = [wait_vm(regs=[reg])] + t() + [branch("s_cbranch_scc1", name + "_ok")]
    spin = with_cond([label(name + "_spin"), raw("s_sleep 2")] + poll_issue(reg, voff) + [Wait(vm=0)] + t() + [branch("s_cbranch_scc0", name + "_spin")], never)
    for i in spin: i.kw["spin"] = True
    return ins + spin + [label(name + "_ok")]
def only_wg0_w3(name, body):
    return [salu("s_lshl_b32", sT0, S(2), 2), salu("s_add_u32", sT0, sT0, sW), scmp("s_cmp_lg_u32", sT0, 3), branch("s_cbranch_scc1", name)] + with_cond(body, never) + [label(name)]
def zero_flags_a(o):
    z = srd(srdOUT, sARG[14], sARG[15], WS_FLG, 512 * 128) + [valu("v_lshlrev_b32", vT[6], 7, vLane), valu("v_mov_b32", vT[7], 0)]
    for i in range(8): z += [salu("s_mov_b32", sT1, i * 8192), buf_store(vT[7], vT[6], srdOUT, sT1, 0, "sc1", op="buffer_store_dword")]
    return only_wg0_w3("L_nozero", z)
def zero_flags_b(o):
    return only_wg0_w3("L_nozero2", srd(srdOUT, sARG[12], sARG[13], 0, 4) + [Wait(vm=0), valu("v_lshlrev_b32", vT[6], 2, vLane), valu("v_mov_b32", vT[7], 1),
                       buf_store(vT[7], vT[6], srdOUT, 0, 0, "sc1", op="buffer_store_dword")])

def head(o):
    ins = [scmp("s_cmp_ge_u32", S(2), 256), branch("s_cbranch_scc1", "L_exit"), smem(f"s_load_dwordx16 {sARG}, s[0:1], 0", [sARG])]
    if o.stamps: ins += [smem(f"s_memrealtime {sStamp[0:2]}", [sStamp[0:2]])]
    t0, t1, t2, t3 = vT[1], vT[2], vT[3], vT[4]
    ins += [valu("v_lshrrev_b32", t0, 6, V(0)), valu("v_and_b32", vLane, 63, V(0)), rfl(sW, t0),
            ]
    if o.map == "m1":
        ins += [salu("s_and_b32", sB, S(2), 7), salu("s_lshr_b32", sH, S(2), 3)]
    else:
        ins += [salu("s_and_b32", sT0, S(2), 1), salu("s_lshl_b32", sT0, sT0, 2), salu("s_lshr_b32", sT1, S(2), 3), salu("s_and_b32", sT1, sT1, 3), salu("s_add_u32", sB, sT0, sT1),
                salu("s_lshr_b32", sT0, S(2), 1), salu("s_and_b32", sT0, sT0, 3), salu("s_lshl_b32", sT0, sT0, 3), salu("s_lshr_b32", sT1, S(2), 5), salu("s_add_u32", sH, sT0, sT1)]
    l = vLane
    ins += [valu("v_bfe_u32", t0, l, 2, 3), valu("v_lshlrev_b32", t0, 10, t0),
            valu("v_lshrrev_b32", t1, 5, l), valu("v_lshl_add_u32", t0, t1, 6, t0),
            valu("v_and_b32", t1, 3, l), valu("v_lshl_add_u32", t0, t1, 4, t0),
            salu("s_lshl_b32", sT0, sW, 16), valu("v_add_u32", vXA, sT0, t0),
            valu("v_add_u32", vXB, 8192, vXA), valu("v_xor_b32", vXB, 32, vXB),
            salu("s_lshl_b32", sT0, sW, 13), salu("s_add_u32", sT0, sT0, 256 * 1024), valu("v_add_u32", vXC, sT0, t0),
            salu("s_and_b32", sT1, sW, 1), salu("s_lshl_b32", sT1, sT1, 5), valu("v_xor_b32", vXC, sT1, vXC)]
    ins += [valu("v_lshrrev_b32", t2, 4, l), valu("v_lshlrev_b32", t2, 6, t2), valu("v_lshl_add_u32", t2, t1, 4, t2),
            valu("v_bfe_u32", t3, l, 2, 2),
            valu("v_lshl_add_u32", vWA, t3, 13, t2), salu("s_lshl_b32", sT0, sW, 17), valu("v_add_u32", vWA, sT0, vWA), valu("v_xor_b32", vWB, 32, vWA),
            valu("v_lshl_add_u32", vDA, t3, 8, t2), salu("s_lshl_b32", sW4k, sW, 12), valu("v_add_u32", vDA, sW4k, vDA), valu("v_xor_b32", vDB, 32, vDA),
            salu("s_lshl_b32", sT0, sB, 1), salu("s_add_u32", sT0, sT0, sH), salu("s_and_b32", sT0, sT0, 7), salu("s_lshl_b32", sQx, sT0, 7), salu("s_lshl_b32", sQw, sT0, 19)]
    ins += [Wait(lgkm=0)]
    ins += [salu("s_mul_i32", sT0, sB, 294912)] + srd(srdX, sARG[0], sARG[1], sT0, 294912)
    ins += [salu("s_lshl_b32", sT0, sH, 8), salu("s_sub_u32", sT1, 4194304, sT0)] + srd(srdWQ, sARG[6], sARG[7], sT0, sT1)
    return ins

def q_dmas(o, buf, tag):
    out = []
    for i in range(4):
        out.append([salu("s_add_u32", sT0, sQw, i * 32768), salu("s_add_u32", "m0", sT1, 36864 + i * 1024), None,
                    buf_dma(vWA if i < 2 else vWB, srdWQ, sT0, 0, o.fw, tag=tag)])
    for t in range(4):
        for hh in range(2):
            out.append([salu("s_add_u32", sT0, sQx, t * 16384), salu("s_add_u32", "m0", sT2, t * 2048 + hh * 1024), None,
                        buf_dma(vXA if hh == 0 else vXB, srdX, sT0, 0, o.fx, tag=tag)])
    out.append([salu("s_add_u32", "m0", sT3, 32768), None, buf_dma(vXC, srdX, sQx, 0, o.fx, tag=tag)])
    pre = [salu("s_lshl_b32", sT2, sW, 13), salu("s_add_u32", sT2, sT2, buf), salu("s_lshl_b32", sT3, sW, 10), salu("s_add_u32", sT3, sT3, buf),
           salu("s_add_u32", sT1, sW4k, buf)]
    return pre, out
def q_adv():
    return [salu("s_add_u32", sQx, sQx, 128), salu("s_and_b32", sQx, sQx, 1023), salu("s_add_u32", sQw, sQw, 524288), salu("s_and_b32", sQw, sQw, 4194303)]
def kv_voff(kind, i): return (vDA if i < 2 else vDB) if kind == "K" else (vDA if i % 2 == 0 else vDB)
def kv_dma(o, kind, st):
    m0 = [salu("s_mov_b32", sT0, st * 16384), salu("s_add_u32", "m0", sW4k, (st % 4) * 16384 + (65536 if kind == "V" else 0)), None]
    return [(m0 if i == 0 else []) + [buf_dma(kv_voff(kind, i), srdK if kind == "K" else srdV, sT0, i * 1024, o.fkv, tag=(kind, st))] for i in range(4)]

def startup(o):
    ins = zero_flags_a(o)
    pre, g = q_dmas(o, QBUF, ("Q", 0)); ins += pre + flat(g) + q_adv()
    pre, g = q_dmas(o, 2 * QBUF, ("Q", 1)); ins += pre + flat(g) + q_adv()
    ins += [salu("s_mov_b32", sBufD, 0), salu("s_mov_b32", sBufR, QBUF)]
    ins += [salu("s_lshl_b32", sT0, sB, 5), salu("s_add_u32", sT0, sT0, sH), salu("s_lshl_b32", sT0, sT0, 18)]
    ins += srd(srdK, sARG[2], sARG[3], sT0, 262144) + srd(srdV, sARG[4], sARG[5], sT0, 262144)
    ins += [salu("s_mul_i32", sT0, sB, 18 * 131072), salu("s_lshl_b32", sT1, sH, 12), salu("s_add_u32", sT0, sT0, sT1),
            salu("s_sub_u32", sT1, 18874368, sT0), salu("s_add_u32", sT0, sT0, WS_O)] + srd(srdO, sARG[14], sARG[15], sT0, sT1)
    ins += srd(srdWO, sARG[8], sARG[9], 0, 4194304) + srd(srdWT, sARG[14], sARG[15], WS_WOT, 4194304)
    ins += [salu("s_mov_b32", sC[0], f2u(SCALE)), salu("s_mov_b32", sC[1], f2u(SCALE)), salu("s_mov_b32", sExecHi[0], 0), salu("s_mov_b32", sExecHi[1], -1)]
    l = vLane; t0, t1, t2, t3, t4 = vT[1], vT[2], vT[3], vT[4], vT[5]
    ins += [valu("v_lshrrev_b32", t0, 4, l), valu("v_bfe_u32", t1, l, 3, 1), valu("v_lshlrev_b32", t2, 1, t1), valu("v_xor_b32", t2, t2, t0), valu("v_lshlrev_b32", t2, 4, t2)]
    ins += [valu("v_lshl_add_u32", t3, t1, 10, t2), valu("v_and_b32", t4, 7, l), valu("v_lshl_add_u32", t3, t4, 6, t3),
            salu("s_lshl_b32", sT0, sW, 13), salu("s_add_u32", sT0, sT0, QBUF), valu("v_add_u32", vXr, sT0, t3),
            salu("s_and_b32", sT0, sW, 1), salu("s_lshl_b32", sT0, sT0, 11), salu("s_add_u32", sT0, sT0, QBUF + 32768), valu("v_add_u32", vXc, sT0, t3)]
    ins += [valu("v_bfe_u32", t3, l, 2, 2), valu("v_lshl_add_u32", t3, t3, 10, t2), valu("v_and_b32", t4, 3, l), valu("v_lshl_add_u32", t3, t4, 6, t3),
            salu("s_lshr_b32", sT0, sW, 1), salu("s_lshl_b32", sT0, sT0, 13), valu("v_add_u32", vKa[0], sT0, t3), valu("v_xor_b32", vKa[1], 8192, vKa[0])]
    ins += [valu("v_bfe_u32", t3, l, 2, 2), valu("v_lshlrev_b32", t3, 6, t3), valu("v_lshl_add_u32", t3, t4, 3, t3),
            valu("v_lshl_add_u32", t2, t0, 10, t3), valu("v_and_b32", t1, 1, t0), valu("v_lshl_add_u32", t2, t1, 5, t2),
            salu("s_add_u32", sT0, sT0, 65536), valu("v_add_u32", vVa[0][0], sT0, t2), valu("v_xor_b32", vVa[0][1], 32, vVa[0][0]),
            valu("v_xor_b32", vVa[1][0], 8192, vVa[0][0]), valu("v_xor_b32", vVa[1][1], 32, vVa[1][0])]
    ins += [valu("v_bfe_u32", t3, l, 2, 2), valu("v_lshlrev_b32", t3, 6, t3), valu("v_lshl_add_u32", t3, t0, 11, t3),
            valu("v_lshlrev_b32", t1, 1, t1), valu("v_xor_b32", t1, t1, t4), valu("v_lshl_add_u32", t3, t1, 4, t3),
            valu("v_lshrrev_b32", t4, 1, t4), valu("v_lshl_add_u32", t3, t4, 3, t3),
            valu("v_add_u32", vWx, QBUF + 36864, t3), valu("v_xor_b32", vWy, 8, vWx), valu("v_lshlrev_b32", vL128, 7, l), valu("v_mov_b32", vT[7], 0), valu("v_mov_b32", vT[6], 0)]
    if o.prew:
        ins += [valu("v_accvgpr_write_b32", A(224 + r), 0) for r in range(4)]
        ins += [salu("s_and_b32", sT0, sW, 1), salu("s_add_u32", sT0, sT0, 16), salu("s_lshl_b32", sT0, sT0, 17), salu("s_lshr_b32", sT1, sW, 1), salu("s_lshl_b32", sT1, sT1, 11),
                salu("s_add_u32", sT0, sT0, sT1), valu("v_lshlrev_b32", vPW, 4, l), salu("s_lshl_b32", sPW, sW, 19),
                buf_store(A(224, 4), vPW, srdO, sT0, 0, "sc1", tag=("PW", 0)), buf_store(A(224, 4), vPW, srdO, sT0, 1024, "sc1", tag=("PW", 0))]
    for q in range(5):
        ins += [valu("v_mov_b32", vL[q], 0)]
        for dt in range(8):
            for r in range(4): ins += [valu("v_mov_b32", acc(q, dt)[r], 0), valu("v_accvgpr_write_b32", Of(q, dt)[r], 0)]
    ins += [wait_vm(tags=[("Q", 0)]), barrier()] + zero_flags_b(o) + stamp(o, "data")
    ins += a_loads(0) + [b_load(0, 0), b_load(0, 1)] + a_loads(1) + [b_load(q, ks) for q in range(1, 5) for ks in range(2)]
    ins += [salu("s_mov_b32", sCnt, 6)]
    return ins

def a_loads(dt):
    s, T = dt >> 1, dt & 1
    return [ds_read("ds_read_b64_tr_b16", Aw(dt, ks)[2 * k:2 * k + 2], vWx if T == 0 else vWy, ks * 8192 + k * 1024 + s * 256) for ks in range(2) for k in range(2)]
def b_load(q, ks): return ds_read("ds_read_b128", Bx(q, ks), vXr if q < 4 else vXc, (q * 2048 if q < 4 else 0) + ks * 512)
def k_load(n, kt, s): return ds_read("ds_read_b128", Kf(kt & 1, s), vKa[kt >> 1], (n & 1) * 16384 + (kt & 1) * 4096 + s * 256)
def v_load(n, dt, c, jh, dst=None):
    return ds_read("ds_read_b64_tr_b16", (dst or Vf(dt, c))[2 * jh:2 * jh + 2], vVa[c][dt & 1], (n & 1) * 16384 + jh * 4096 + (dt >> 1) * 256)

def pw_store(o):
    return [buf_store(A(224, 4), vPW, srdO, sPW, 0, "sc1", tag=("PW", 0)), salu("s_add_u32", sPW, sPW, 1024), raw(f"s_bitcmp1_b32 {sPW}, 12", rd=[sPW], wr=["scc"]),
            salu("s_cselect_b32", sT5, 131072 - 4096, 0), salu("s_add_u32", sPW, sPW, sT5)]
def q_stage(o, mode):
    gaps = [[] for _ in range(80)]
    M = [mfma(acc(q, dt), Aw(dt, ks), Bx(q, ks)) for dt in range(8) for q in range(5) for ks in range(2)]
    pre = []
    for dt, g0 in {2: 10, 3: 14, 4: 20, 5: 28, 6: 34, 7: 42}.items():
        for k, ld in enumerate(a_loads(dt)): gaps[g0 + k].append(ld)
    if mode == "loop":
        p_, groups = q_dmas(o, sBufD, lambda e: ("Q", e["s"] + 2))
        for k, x in enumerate(p_): gaps[k].append(x)
        lo, hi = 5, 58
    else:
        groups = []
        for kind, st in ([("K", 0), ("K", 1)] if mode == "s6" else [("V", 0), ("K", 2)]): groups += kv_dma(o, kind, st)
        lo, hi = (1, 58) if mode == "s6" else (1, 78)
    free = [g for g in range(lo, hi) if not gaps[g] and g % 10 != 9]
    step = len(free) / len(groups)
    for k, grp in enumerate(groups):
        sal = [x for x in grp[:-1] if x is not None]
        a, b = free[int(k * step)], free[int(k * step) + 1]
        gaps[a] += sal; gaps[b].insert(0, grp[-1])
    if o.prew:
        for j in range(2):
            g = 55 + j if mode != "s7" else 60 + 8 * j
            gaps[g] += pw_store(o)
    for dt in range(8):
        regs = [Aw(dt, 0), Aw(dt, 1)] + ([Aw(7, 0), Aw(7, 1)] if dt == 6 else [])
        if dt == 0: pre.append(wait_lgkm(Aw(0, 0), Aw(0, 1), Bx(0, 0), Bx(0, 1)))
        else: gaps[10 * dt - 1].insert(0, wait_lgkm(*regs))
    for q in range(1, 5): gaps[2 * q - 1].insert(0, wait_lgkm(Bx(q, 0), Bx(q, 1)))
    if mode != "s7":
        gaps[58] += [wait_vm(tags=[(lambda e: ("Q", e["s"] + 1))])]
        gaps[59] += [barrier()]
        gaps[50] += [salu("s_add_u32", sT4, sBufR, QBUF), scmp("s_cmp_eq_u32", sT4, 3 * QBUF), salu("s_cselect_b32", sT4, 0, sT4)]
        gaps[51] += [salu("s_sub_u32", sDelta, sT4, sBufR)]
        gaps[52] += [salu("s_mov_b32", sBufR, sT4), valu("v_add_u32", vWx, sDelta, vWx)]
        gaps[53] += [valu("v_add_u32", vWy, sDelta, vWy), valu("v_add_u32", vXr, sDelta, vXr)]
        gaps[54] += [valu("v_add_u32", vXc, sDelta, vXc)]
        for k, ld in enumerate(a_loads(0) + a_loads(1)): gaps[60 + k].append(ld)
        for t in range(10): gaps[70 + t].insert(0, b_load(t >> 1, t & 1))
    if mode == "loop":
        gaps[67] += q_adv()[:2]; gaps[68] += q_adv()[2:]
        gaps[69] += [salu("s_add_u32", sBufD, sBufD, QBUF), scmp("s_cmp_eq_u32", sBufD, 3 * QBUF), salu("s_cselect_b32", sBufD, 0, sBufD)]
        gaps[78] += [salu("s_sub_u32", sCnt, sCnt, 1)]
        gaps[79] += [scmp("s_cmp_lg_u32", sCnt, 0), branch("s_cbranch_scc1", "L_qloop")]
    ins = ([label("L_qloop")] if mode == "loop" else []) + pre
    for m, g in zip(M, gaps): ins += [m] + g
    return ins

def q_epilogue(o):
    parts = []
    for q in range(5):
        ins = []
        for s in range(4):
            X, Y = acc(q, 2 * s), acc(q, 2 * s + 1)
            for T in (X, Y):
                for h in range(2): ins += [valu("v_pk_mul_f32", T[2 * h:2 * h + 2], T[2 * h:2 * h + 2], sC)]
            ins += [valu("v_cvt_pk_bf16_f32", X[0], X[0], X[1]), valu("v_cvt_pk_bf16_f32", X[1], X[2], X[3]),
                    valu("v_cvt_pk_bf16_f32", X[2], Y[0], Y[1]), valu("v_cvt_pk_bf16_f32", X[3], Y[2], Y[3])]
        parts.append(ins)
    sw = [salu("s_mov_b64", "exec", sExecHi)]
    for q in range(5):
        for s in range(4): sw += [vswap("v_swap_b32", Qf(q, s)[0], Qf(q, s)[2]), vswap("v_swap_b32", Qf(q, s)[1], Qf(q, s)[3])]
    sw += [salu("s_mov_b64", "exec", -1)]
    kb = [wait_vm(tags=[("K", 0)]), barrier()] + [k_load(0, kt, s) for kt in range(2) for s in range(4)]
    return parts[0] + parts[1] + parts[2] + parts[3] + kb + parts[4] + sw

def wot_dma(o):
    l = vLane; t0, t1 = vT[1], vT[2]
    ins = [salu("s_lshl_b32", sT0, sH, 2), salu("s_add_u32", sT0, sT0, sW), salu("s_lshl_b32", sT0, sT0, 15),
           salu("s_lshl_b32", sT1, sB, 7), salu("s_add_u32", sT0, sT0, sT1),
           valu("v_lshrrev_b32", t0, 3, l), valu("v_lshlrev_b32", t0, 10, t0), valu("v_and_b32", t1, 7, l), valu("v_lshl_add_u32", t0, t1, 4, t0),
           salu("s_mov_b32", sT2, "m0")]
    for i in range(4):
        ins += [salu("s_add_u32", "m0", sW4k, 131072 + i * 1024), salu("s_add_u32", sT1, sT0, i * 8192), buf_dma(t0, srdWO, sT1, 0, o.fwo, tag=("WO", 0))]
    return ins + [salu("s_mov_b32", "m0", sT2)]
def wot_finish(o):
    l = vLane; t0, t1, t2 = vT[1], vT[2], vT[3]
    ins = [valu("v_lshrrev_b32", t0, 2, l), valu("v_lshlrev_b32", t0, 7, t0), valu("v_and_b32", t1, 3, l), valu("v_lshl_add_u32", t0, t1, 5, t0),
           salu("s_add_u32", sT0, sW4k, 131072), valu("v_add_u32", t0, sT0, t0), valu("v_lshlrev_b32", t2, 4, l),
           salu("s_lshl_b32", sT1, sB, 7), salu("s_lshl_b32", sT0, sH, 2), salu("s_add_u32", sT0, sT0, sW), salu("s_add_u32", sT0, sT0, sT1), salu("s_lshl_b32", sT0, sT0, 12),
           wait_vm(tags=[("WO", 0)])]
    dst = [A(224 + 4 * ct, 4) for ct in range(4)]
    for ct in range(4):
        for jh in range(2): ins += [ds_read("ds_read_b64_tr_b16", dst[ct][2 * jh:2 * jh + 2], t0, jh * 2048 + ct * 8)]
    for ct in range(4): ins += [wait_lgkm(dst[ct]), buf_store(dst[ct], t2, srdWT, sT0, ct * 1024, "sc1", tag=("WTST", 0))]
    return ins

TILES = [(kt, q) for kt in range(2) for q in range(5)] + [(kt, q) for kt in (2, 3) for q in range(4)]
def qk_list(n): return [mfma(St(j), Kf(kt & 1, s), Qf(q, s), 0 if s == 0 else None) for j, (kt, q) in enumerate(TILES) for s in range(4)]
def pv_list(n):
    out = []
    for dt in range(8):
        out += [mfma(Of(q, dt), Vf(dt, c), Pf(n & 1, 2 * q + c)) for q in range(4) for c in range(2)]
        out.append(mfma(Of(4, dt), Vf(dt, 0), Pf(n & 1, 8)))
    return out

class Tmpl:
    def __init__(self, o):
        self.o = o
        self.sh = [None] * 144; self.post = [[] for _ in range(144)]; self.cap = [2 if t % 2 else 0 for t in range(144)]
        self.build()
    def shadow(self, fn, lo, hi, par, cost=0):
        for t in range(lo, hi + 1):
            if t % 2 == par and self.sh[t % 144] is None:
                self.sh[t % 144] = (fn, -(t // 144)); self.cap[t % 144] -= cost
                return t
        raise Exception(f"no shadow slot in {lo}..{hi}")
    def build(self):
        o = self.o
        valid = lambda st: 0 <= st <= 15
        tg = lambda kind, st: (lambda e: (kind, st + 2 * e.get("k", 0)))
        self.shadow(lambda n: (wait_vm(tags=[tg("K", n + 1), tg("V", n)]) if n < 15 else Wait(vm=0)) if n <= 15 else None, 70, 70, 0)
        self.shadow(lambda n: barrier() if n <= 15 else None, 72, 72, 0)
        ok = lambda n: 0 <= n <= 14
        for k in range(8):
            kind, i, t = ("V" if k < 4 else "K"), k % 4, 75 + o.dstep * k
            d = 2 if kind == "V" else 3
            ok = lambda n, d=d: 0 <= n <= 14
            if i == 0:
                def m0f(n, kind=kind, ok=ok):
                    if not ok(n): return None
                    if kind == "K": return salu("s_xor_b32", "m0", sRing, 0 if n & 1 else 49152)
                    return salu("s_xor_b32", "m0", sRing, 65536 + 32768 + (n & 1) * 16384)
                self.shadow(m0f, t - 1, t - 1, 0)
            self.shadow(lambda n, kind=kind, i=i, d=d, ok=ok: buf_dma(kv_voff(kind, i), srdK if kind == "K" else srdV, sKoff if kind == "K" else sVoff, i * 1024, o.fkv, tag=tg(kind, n + d)) if ok(n) else None, t, t, 1, cost=2)
        ok = lambda n: 0 <= n <= 14
        self.shadow(lambda n: salu("s_add_u32", sVoff, sVoff, 16384) if ok(n) else None, 132, 140, 0)
        self.shadow(lambda n: salu("s_add_u32", sKoff, sKoff, 16384) if ok(n) else None, 144 + 60, 144 + 66, 0)
        self.shadow(lambda n: salu("s_xor_b32", sRing, sRing, 32768) if (ok(n) and n & 1) else None, 144 + 60, 144 + 66, 0)
        for s in range(4): self.shadow(lambda n, s=s: k_load(n, 2, s) if valid(n) else None, 21, 35, 1, cost=1)
        for s in range(4): self.shadow(lambda n, s=s: k_load(n, 3, s) if valid(n) else None, 41, 51, 1, cost=1)
        for dt in range(4, 8):
            lo = 72 + 9 * (dt - 4) + 9
            for c in range(2):
                for jh in range(2): self.shadow(lambda n, dt=dt, c=c, jh=jh: v_load(n - 1, dt, c, jh) if valid(n - 1) else None, lo, lo + 22, 1, cost=1)
        for kt in range(2):
            for s in range(4): self.shadow(lambda n, s=s, kt=kt: k_load(n + 1, kt, s) if valid(n + 1) else None, 123 if kt else 73, 141, 1, cost=1)
        los = [1, 9, 29, 53]
        for dt in range(4):
            for c in range(2):
                for jh in range(2): self.shadow(lambda n, dt=dt, c=c, jh=jh: v_load(n - 1, dt, c, jh) if valid(n - 1) else None, los[dt], 69, 1, cost=1)
        for kt, t in ((0, 142), (1, 18), (2, 38), (3, 54)):
            d = 1 if kt == 0 else 0
            self.shadow(lambda n, kt=kt, d=d: wait_lgkm(*[Kf(kt & 1, s) for s in range(4)]) if valid(n + d) else None, t, t, 0)
        for dt in range(8):
            t = 72 + 9 * dt - 1
            t -= t % 2
            if dt == 0: t = 68
            self.shadow(lambda n, dt=dt: wait_lgkm(Vf(dt, 0), Vf(dt, 1)) if valid(n - 1) else None, t - 2 if self.sh[t] else t, t, 0)
        extra = {56: [lambda n, r=r: valu("v_xor_b32", r, 32768, r) if (n & 1 and n <= 14) else None for r in vKa],
                 136: [lambda n, r=r: valu("v_xor_b32", r, 32768, r) if (n % 2 == 0 and 2 <= n <= 15) else None for r in vVa[0]],
                 138: [lambda n, r=r: valu("v_xor_b32", r, 32768, r) if (n % 2 == 0 and 2 <= n <= 15) else None for r in vVa[1]]}
        lag = o.lag; ready = []; k = 0
        for t in range(lag, lag + 144 + 12):
            tt = t % 144; dl = -(t // 144)
            if tt in extra and t < lag + 144:
                for f in extra[tt]: self.post[tt].append((f, 0))
            if t % 2 == 0 and k < 72:
                j, r = k // 4, k % 4
                kt, q = TILES[j]
                self.post[tt].append((lambda n, j=j, r=r: valu("v_exp_f32", St(j)[r], St(j)[r]) if valid(n) else None, dl))
                newops = [(lambda n, j=j, r=r, q=q: valu("v_add_f32", vL[q], St(j)[r], vL[q]) if valid(n) else None)]
                if r & 1:
                    f = 2 * q + (kt >> 1) if q < 4 else 8
                    newops.append(lambda n, j=j, r=r, f=f, kt=kt: valu("v_cvt_pk_bf16_f32", Pf(n & 1, f)[2 * (kt & 1) + (r >> 1)], St(j)[r - 1], St(j)[r]) if valid(n) else None)
                k += 1
                if len(ready) >= o.backlog: self.post[tt].append((ready.pop(0), dl))
                ready += newops
            elif t % 2 == 1 or k >= 72:
                c = self.cap[tt] if t < lag + 144 else 0
                if k >= 72 and t >= lag + 143: c = max(c, 1)
                for _ in range(max(c, 0)):
                    if ready: self.post[tt].append((ready.pop(0), dl))
                if t < lag + 144: self.cap[tt] = 0
        assert not ready, len(ready)
    def emit(self, n0, t0, n1, t1, fill=None):
        rows = []
        n, t = n0, t0
        cache = {}
        while (n, t) != (n1, t1):
            if n not in cache: cache[n] = (qk_list(n), pv_list(n - 1))
            m = None
            if t < 72:
                if 0 <= n <= 15: m = cache[n][0][t]
            elif 0 <= n - 1 <= 15: m = cache[n][1][t - 72]
            sh = self.sh[t][0](n + self.sh[t][1]) if self.sh[t] else None
            post = [x for x in (f(n + dl) for f, dl in self.post[t]) if x]
            rows.append([m, [sh] if sh else [], post, t])
            t += 1
            if t == 144: t = 0; n += 1
        if fill:
            free = [j for j in range(1, len(rows)) if rows[j][0] and rows[j][3] % 2 == 1 and not rows[j][1]]
            if len(free) < len(fill): free = [j for j in range(1, len(rows)) if rows[j][0] and not rows[j][1]]
            assert len(free) >= len(fill), (len(free), len(fill))
            for k, g in enumerate(fill):
                j = free[int((k + 0.5) * len(free) / len(fill))]
                rows[j][1] = [g[-1]]
                pre = [x for x in g[:-1] if x is not None]
                if rows[j - 1][1]: rows[j - 1][2] += pre
                else: rows[j - 1][1] = pre
        ins = []
        for m, sh, post, t in rows: ins += ([m] if m else []) + sh + post
        return ins

vA, vB, vBc = vT[6], V(2), V(3)
NA = 9
_spare = [A(224 + 4 * i, 4) for i in range(8)]
_early1 = [Qf(q, s) for q in range(5) for s in range(4)]
_tmp = [St(j) for j in range(8)]
_early2 = [St(j) for j in range(8, 18)] + [Pf(0, f) for f in range(9)]
_e = _spare + _early1 + _early2
_Aslots = _e[:40]
_lateV = _e[40:] + [Pf(1, f) for f in range(9)] + _tmp + [G(56), G(57)]
assert all(r.kind == "v" for r in _lateV) and len(_lateV) == 26
_lateA = [Of(q, dt) for q in range(5) for dt in range(8)] + [A(160 + 4 * i, 4) for i in range(16)]
_C = _lateV[:20]
_rest = _lateA + _lateV[20:]
_Aslots += _rest[:32]; _B = _rest[32:62]
assert len(_B) == 30
def Cf(ct, rt): return _C[5 * ct + rt]
def Bf(pr, k, rt): return _B[10 * (pr % 3) + 5 * k + rt]
def Af(pr, k, ct): return _Aslots[8 * (pr % NA) + 4 * k + ct]
LDSP = (9, 10, 11)
LSLOT = [0, 16384, 32768, 65536, 49152, 81920]
def rot_off(o, dst, rot, pr, unit, extra):
    B = o.rblk
    if B == 1: return [salu("s_mov_b32", dst, pr * unit + extra)]
    out = [salu("s_add_u32", dst, rot, (pr % B) * unit + extra), salu("s_and_b32", dst, dst, B * unit - 1)]
    return out + ([salu("s_or_b32", dst, dst, (pr - pr % B) * unit)] if pr >= B else [])
def a2_loads(o, pr):
    return [(rot_off(o, sKA, sRotA, pr, 8192, k * 4096) if ct == 0 else []) + [buf_load(Af(pr, k, ct), vA, srdWT, sKA, ct * 1024, o.fa)] for k in range(2) for ct in range(4)]
def a2_dmas(o, j):
    pr, k = LDSP[j >> 1], j & 1
    return [(rot_off(o, sKB, sRotA, pr, 8192, k * 4096) + [salu("s_add_u32", "m0", sW4k, LSLOT[j]), None] if ct == 0 else []) + [buf_dma(vA, srdWT, sKB, ct * 1024, o.fa, tag=("AL", pr))] for ct in range(4)]
def a2_ldsreads(pr):
    out = []
    for k in range(2):
        off = LSLOT[2 * LDSP.index(pr) + k]
        out += [[ds_read("ds_read_b128", Af(pr, k, ct), vT[4] if off < 65536 else vT[5], off % 65536 + ct * 1024)] for ct in range(4)]
    return out
def a2_touch(o, prs):
    t0 = vT[1]
    return [[valu("v_lshlrev_b32", t0, 7, vLane), salu("s_lshl_b32", sT0, sW, 17), salu("s_lshl_b32", sT1, sMj, 13), salu("s_add_u32", sT0, sT0, sT1), salu("s_add_u32", sT0, sT0, prs * 8192),
             buf_load(vT[2], t0, srdWT, sT0, 0, o.fa, op="buffer_load_dword")]]
def b2_loads(o, pr):
    out = []
    for rt in range(5):
        for k in range(2):
            r = sT0 if rt % 2 == 0 else sT1
            pre = ([salu("s_add_u32", r, sRT[rt], sPB)] if rt < 4 else [salu("s_mov_b32", r, sPB)]) if k == 0 else []
            if rt == 0 and k == 0: pre = rot_off(o, sPB, sRotB, pr, 2048, 0) + pre
            out.append(pre + [buf_load(Bf(pr, k, rt), vB if rt < 4 else vBc, srdO2, r, k * 1024, o.fb)])
    return out

XB = 131072
def V15(dt, c): return Vf(dt, c) if dt < 4 else A(160 + 8 * (dt - 4) + 4 * c, 4)
def final_pv(o, T, fill, late):
    l = vLane; t0, t1, t2, t3 = vT[1], vT[2], vT[3], vT[4]
    vSo, vSc = vKa[0], vKa[1]
    dts = [4, 5, 6, 7, 0, 1, 2, 3]
    M = [mfma(Of(4, dt), V15(dt, 0), Pf(1, 8)) for dt in dts]
    for q in range(4): M += [mfma(Of(q, dt), V15(dt, c), Pf(1, 2 * q + c)) for dt in dts for c in range(2)]
    tail = [x for x in T.emit(16, 0, 16, 72) if x.kind in ("valu", "trans")]
    vl = [v_load(15, dt, c, jh) for c in range(2) for dt in range(4) for jh in range(2)]
    ops = []
    ops += [(0, x) for x in tail]
    ops += [(0, x) for x in [valu("v_lshlrev_b32", t0, 4, l), salu("s_add_u32", sT0, sW4k, XB), valu("v_add_u32", t1, sT0, t0), valu("v_xor_b32", t2, 8192, t1),
            salu("s_lshl_b32", sT0, sW, 8), salu("s_add_u32", sT0, sT0, XB + 16384), valu("v_lshl_add_u32", t3, l, 2, sT0),
            salu("s_lshl_b32", sT0, sW, 19), valu("v_add_u32", vSo, sT0, t0),
            salu("s_and_b32", sT0, sW, 1), salu("s_add_u32", sT0, sT0, 16), salu("s_lshl_b32", sT0, sT0, 17), salu("s_lshr_b32", sT1, sW, 1), salu("s_lshl_b32", sT1, sT1, 11),
            salu("s_add_u32", sT0, sT0, sT1), valu("v_add_u32", vSc, sT0, t0)]]
    cx = [scmp("s_cmp_ge_u32", sW, 2), branch("s_cbranch_scc1", "L_cx1")] + [ds_write("ds_write_b128", t1, Of(4, 4 + d), d * 1024) for d in range(4)] + [label("L_cx1r")]
    cx += out_of_line(with_cond([label("L_cx1")] + [ds_write("ds_write_b128", t1, Of(4, d), d * 1024) for d in range(4)]
                                + [I(f"v_accvgpr_mov_b32 {Of(4, d)[r]}, {Of(4, 4 + d)[r]}", "valu", rd=[Of(4, 4 + d)[r]], wr=[Of(4, d)[r]]) for d in range(4) for r in range(4)]
                                + [branch("s_branch", "L_cx1r")], never))
    cx += [ds_write("ds_write_b32", t3, vL[4]), valu("v_xor_b32", t3, 512, t3)]
    def lred(q):
        L = vL[q]; out = []
        for op in ("v_permlane32_swap_b32", "v_permlane16_swap_b32"):
            out += [valu("v_mov_b32", t0, L), nop(1), vswap(op, L, t0), valu("v_add_f32", L, L, t0)]
        return out + [valu("v_rcp_f32", L, L)]
    part = _tmp[:4]; tmp = _tmp[4:]
    cnt = [0]
    def unit(q, s, packed):
        X, Y = tmp[(2 * cnt[0]) % 4], tmp[(2 * cnt[0] + 1) % 4]; cnt[0] += 1
        out = [salu("s_mov_b32", sT1, q * 131072 if q < 4 else 0)] if s == 0 else []
        for Tt, dt in ((X, 2 * s), (Y, 2 * s + 1)):
            out += [valu("v_accvgpr_read_b32", Tt[r], Of(q, dt)[r]) for r in range(4)]
            if q == 4: out += [valu("v_pk_add_f32", Tt[h:h + 2], Tt[h:h + 2], part[dt][h:h + 2]) for h in (0, 2)]
            if packed:
                hi = vL[q].lo & 1
                out += [valu("v_pk_mul_f32", Tt[h:h + 2], Tt[h:h + 2], Reg("v", vL[q].lo - hi, 2), extra=f" op_sel:[0,{hi}] op_sel_hi:[1,{hi}]") for h in (0, 2)]
            else: out += [valu("v_mul_f32", Tt[r], vL[q], Tt[r]) for r in range(4)]
        return out + [valu("v_cvt_pk_bf16_f32", X[0], X[0], X[1]), valu("v_cvt_pk_bf16_f32", X[1], X[2], X[3]),
                      valu("v_cvt_pk_bf16_f32", X[2], Y[0], Y[1]), valu("v_cvt_pk_bf16_f32", X[3], Y[2], Y[3]),
                      buf_store(X, vSo if q < 4 else vSc, srdO, sT1, s * 1024, o.fost, tag=("OST", 0))]
    for q in range(4): ops += [(0, x) for x in lred(q)]
    units = [(8 + 16 * (q + 1) + 2, q, s) for q in range(4) for s in range(4)]
    ins = [wait_lgkm(*[V15(dt, 0) for dt in range(4, 8)])]
    fill = list(fill)
    K = o.kfin
    sub = []
    for g, m in enumerate(M):
        ins.append(m)
        if vl: ins.append(vl.pop(0))
        elif fill and g % 2 == 1: ins += [fill[0][-1]]; fill.pop(0)
        if fill and not vl and g % 2 == 0: ins += [x for x in fill[0][:-1] if x is not None]
        if g == 3: ins += vl[:5]; del vl[:5]; ins.append(wait_lgkm(*[V15(dt, 0) for dt in range(4)]))
        if g == 7: ins.append(wait_lgkm(*[V15(dt, 1) for dt in range(4, 8)]))
        if g == 15: ins.append(wait_lgkm(*[V15(dt, 1) for dt in range(4)]))
        if g == 16: ins += cx
        if g == 34:
            ins += [Wait(lgkm=0), barrier()] + [ds_read("ds_read_b128", part[d], t2, d * 1024) for d in range(4)] + [ds_read("ds_read_b32", vT[5], t3)]
        n = 0
        while n < K:
            if ops: x = ops.pop(0)[1]
            elif sub: x = sub.pop(0)
            elif units and units[0][0] <= g:
                _, q, s_ = units.pop(0); sub = unit(q, s_, False); continue
            else: break
            ins.append(x); n += 2 if x.kind == "trans" else (0 if x.kind in ("salu", "nop") else 1)
    ins += [x for _, x in ops] + sub + flat(fill) + stamp(o, "aend")
    late = list(late)
    def read_already(g):
        dst = set(g[-1].wr)
        if not any(r[0] == "a" and int(r[1:]) < 160 for r in dst): return True
        return dst <= {r for x in ins if x.kw.get("op") == "v_accvgpr_read_b32" for r in x.rd}
    def some(n):
        out = []
        while late and n > 0 and read_already(late[0]): out += flat([late.pop(0)]); n -= 1
        return out
    for _, q, s_ in units: ins += unit(q, s_, True); ins += some(o.nper)
    ins += [wait_lgkm(vT[5]), valu("v_add_f32", vL[4], vT[5], vL[4])] + lred(4) + unit(4, 0, True) + unit(4, 1, True)
    return ins, late

def o_touch(o):
    if not o.otouch: return []
    l = vLane; t0, t1 = vT[1], vT[2]
    return [valu("v_and_b32", t0, 31, l), valu("v_lshlrev_b32", t0, 7, t0), valu("v_lshrrev_b32", t1, 5, l), valu("v_lshl_add_u32", t0, t1, 17, t0),
            salu("s_lshl_b32", sT0, sW, 19), buf_load(A(240), t0, srdO, sT0, 0, o.ft, op="buffer_load_dword"),
            salu("s_add_u32", sT0, sT0, 262144), buf_load(A(241), t0, srdO, sT0, 0, o.ft, op="buffer_load_dword"),
            valu("v_and_b32", t0, 15, l), valu("v_lshlrev_b32", t0, 7, t0),
            salu("s_and_b32", sT0, sW, 1), salu("s_add_u32", sT0, sT0, 16), salu("s_lshl_b32", sT0, sT0, 17), salu("s_lshr_b32", sT1, sW, 1), salu("s_lshl_b32", sT1, sT1, 11),
            salu("s_add_u32", sT0, sT0, sT1), buf_load(A(242), t0, srdO, sT0, 0, o.ft, op="buffer_load_dword")]
def p2_setup(o):
    l = vLane; t0, t1 = vT[1], vT[2]
    ins = [valu("v_lshlrev_b32", t0, 4, l),
           salu("s_lshl_b32", sT0, sW, 15), salu("s_lshl_b32", sT1, sMj, 19), salu("s_add_u32", sT1, sT1, sT0), valu("v_add_u32", vB, sT1, t0),
           valu("v_and_b32", t1, 0x37, l), salu("s_and_b32", sT1, sMj, 1), salu("s_lshl_b32", sT1, sT1, 3), valu("v_or_b32", t1, sT1, t1), valu("v_lshlrev_b32", t1, 4, t1),
           salu("s_lshr_b32", sT1, sMj, 1), salu("s_add_u32", sT1, sT1, 16), salu("s_lshl_b32", sT1, sT1, 17), salu("s_add_u32", sT1, sT1, sT0), valu("v_add_u32", vBc, sT1, t1),
           valu("v_add_u32", vT[4], sW4k, t0), valu("v_add_u32", vT[5], 65536, vT[4])]
    for r in range(4): ins += [salu("s_add_u32", sT0, sW, r), salu("s_and_b32", sT0, sT0, 3), salu("s_lshl_b32", sRT[r], sT0, 17)]
    ins += [salu("s_mul_i32", sT0, sB2, 18 * 131072), salu("s_add_u32", sT0, sT0, WS_O)] + srd(srdO2, sARG[14], sARG[15], sT0, 18 * 131072)
    return ins

RED = 98304
def red_addr(o):
    l = vLane; t0, t1, t2 = vT[1], vT[2], vT[3]
    ins = [valu("v_lshlrev_b32", t0, 4, l)]
    for r in range(1, 4):
        ins += [salu("s_add_u32", sT2, sW, r), salu("s_and_b32", sT2, sT2, 3), salu("s_mul_i32", sT2, sT2, 12288), salu("s_add_u32", sT2, sT2, RED + (r - 1) * 4096), valu("v_add_u32", V(3 + r), sT2, t0)]
    ins += [salu("s_add_u32", sT2, sW4k, RED + 49152), valu("v_add_u32", V(7), sT2, t0),
            salu("s_mul_i32", sT2, sW, 12288), salu("s_add_u32", sT2, sT2, RED), valu("v_add_u32", V(8), sT2, t0),
            salu("s_lshl_b32", sT2, sW, 10), salu("s_add_u32", sT2, sT2, RED + 49152), valu("v_add_u32", V(9), sT2, t0),
            valu("v_and_b32", t1, 15, l), valu("v_lshrrev_b32", t2, 4, l), valu("v_lshlrev_b32", t2, 5, t2), valu("v_lshl_add_u32", t2, t1, 10, t2),
            salu("s_lshl_b32", sT2, sMj, 16), salu("s_lshl_b32", sT3, sW, 14), salu("s_add_u32", sT2, sT2, sT3), valu("v_add_u32", V(10), sT2, t2),
            salu("s_lshl_b32", sT2, sMj, 13), salu("s_lshl_b32", sT3, sW, 3), salu("s_add_u32", sT2, sT2, sT3), salu("s_add_u32", sT2, sT2, 256 * 1024), valu("v_add_u32", V(11), sT2, t2),
            vcmp("v_cmp_gt_u32", "vcc", 8, t1), valu("v_mov_b32", t0, 0x7ffffff0), nop(0), cndmask(V(11), t0, V(11)),
            salu("s_mul_i32", sT2, sB2, 294912), salu("s_lshl_b32", sT3, sNj, 7), salu("s_add_u32", sT2, sT2, sT3), salu("s_sub_u32", sT3, 8 * 294912, sT2)]
    ins += srd(srdOUT, sARG[10], sARG[11], sT2, sT3)
    return ins
def p2_main(o, pend):
    ins = []
    pend = list(pend) + [(pr, g) for pr in range(NA, 16) if pr not in LDSP for g in a2_loads(o, pr)]
    def take(pr, n):
        out = []
        while pend and (pend[0][0] < NA or pend[0][0] - NA < pr) and (len(out) < n or pend[0][0] <= pr + 2): out.append(pend.pop(0)[1])
        return out
    ins += flat(take(-2, 0)) + flat(b2_loads(o, 0)) + flat(take(-1, 0)) + flat(b2_loads(o, 1))
    ins += red_addr(o)
    for pr in range(16):
        order = [0, 1, 2, 3, 4] if pr < 15 else [4, 1, 2, 3, 0]
        M = [mfma(Cf(ct, rt), Af(pr, k, ct), Bf(pr, k, rt), 0 if (pr == 0 and k == 0) else None) for rt in order for ct in range(4) for k in range(2)]
        left = max(1, o.alast - pr)
        ga = take(pr, -(-len(pend) // left))
        gb = (b2_loads(o, pr + 2) if pr + 2 < 16 else [])
        groups = gb + ga
        nx = pr - 1 + NA
        lds = a2_ldsreads(nx) if nx in LDSP else []
        gaps = [[] for _ in range(40)]
        if groups:
            step = o.span / len(groups)
            for j, g in enumerate(groups):
                t = int(j * step)
                gaps[t] = gaps[t] + [g[-1]] if gaps[t] and gaps[t][0].kind == "vm_ld" else [g[-1]] + gaps[t]
                if len(g) > 1:
                    pre = g[:-1]
                    if t > 0 and int((j - 1) * step) < t: gaps[t - 1] += pre
                    elif t == 0 and j == 0: ins += pre
                    else: gaps[t] = gaps[t][:-1] + pre + gaps[t][-1:]
        fr = [t for t in range(40) if not gaps[t]]
        for j, g in enumerate(lds): gaps[fr[j * len(fr) // 8] if len(fr) >= 8 else 5 * j].insert(0, g[0])
        if nx == LDSP[0]: ins.append(wait_vm(tags=[("AL", p_) for p_ in LDSP]))
        for j, rt in enumerate(order):
            aregs = [Af(pr, k, c) for k in range(2) for c in range(4)] if j == 0 else []
            w = [wait_vm(regs=[Bf(pr, 0, rt), Bf(pr, 1, rt)] + aregs)] + ([wait_lgkm(*aregs)] if (j == 0 and pr in LDSP) else [])
            if j == 0: ins += w
            else: gaps[8 * j - 1] += w
        if pr == 15:
            for j, rt in enumerate(order[:4]):
                for ct in range(4):
                    wr = ds_write("ds_write_b128", V(7) if rt == 4 else V(3 + rt), Cf(ct, rt), ct * 1024)
                    gaps[min(39, 8 * j + 2 * ct + 1 + 8)].insert(0, wr)
        for m, g in zip(M, gaps): ins += [m] + g
        ins += stamp(o, f"p{pr}")
    assert not pend
    return ins
def p2_reduce(o):
    ins = [Wait(lgkm=0), barrier()] + stamp(o, "red")
    src = [[_B[4 * j + ct] if _B[4 * j + ct].kind == "v" else None for ct in range(4)] for j in range(3)]
    vfree = [r for r in _Aslots + _B if r.kind == "v"]
    src = [[vfree[4 * j + ct] for ct in range(4)] for j in range(4)]
    for j in range(3): ins += [ds_read("ds_read_b128", src[j][ct], V(8), j * 4096 + ct * 1024) for ct in range(4)]
    ins += [ds_read("ds_read_b128", src[3][w], V(9), w * 4096) for w in range(4)]
    for j in range(3):
        for ct in range(4):
            ins += [wait_lgkm(src[j][ct])] + [valu("v_pk_add_f32", Cf(ct, 0)[h:h + 2], Cf(ct, 0)[h:h + 2], src[j][ct][h:h + 2]) for h in (0, 2)]
    for e in range(2):
        X, Y = Cf(2 * e, 0), Cf(2 * e + 1, 0)
        ins += [valu("v_cvt_pk_bf16_f32", X[0], X[0], X[1]), valu("v_cvt_pk_bf16_f32", X[1], X[2], X[3]),
                valu("v_cvt_pk_bf16_f32", X[2], Y[0], Y[1]), valu("v_cvt_pk_bf16_f32", X[3], Y[2], Y[3]), buf_store(X, V(10), srdOUT, 0, 16 * e, o.fout)]
    X = src[3][0]
    ins += [wait_lgkm(src[3][3])]
    for w in range(1, 4): ins += [valu("v_pk_add_f32", X[h:h + 2], X[h:h + 2], src[3][w][h:h + 2]) for h in (0, 2)]
    ins += [valu("v_cvt_pk_bf16_f32", X[0], X[0], X[1]), valu("v_cvt_pk_bf16_f32", X[1], X[2], X[3]), buf_store(X[0:2], V(11), srdOUT, 0, 0, o.fout, op="buffer_store_dwordx2")]
    return ins

def throttle(ins, lim=56, to=40):
    out = []; n = 0
    for i in ins:
        if i.kind in ("vm_ld", "vm_dma", "vm_st") and "cond" not in i.kw:
            if n >= lim: out.append(Wait(vm=to)); n = to
            n += 1
        if isinstance(i, Wait) and isinstance(i.vm, int): n = min(n, i.vm)
        out.append(i)
    return out
def kernel(o):
    p = Prog("F")
    NL = 7
    p.seg(head(o)); p.seg(startup(o))
    p.seg(q_stage(o, "loop"), envs=[{"s": s} for s in range(6)], fix=False)
    p.seg(stamp(o, "q6") + q_stage(o, "s6"), envs=[{"s": 6}], fix=False)
    p.seg(stamp(o, "q7") + q_stage(o, "s7"), envs=[{"s": 7}])
    p.seg(stamp(o, "qend") + srd(srdF, sARG[12], sARG[13], 0, 4) + poll_issue(vT[0]) + q_epilogue(o))
    if o.map2 == 1: ids = [salu("s_and_b32", sB2, S(2), 7), salu("s_lshr_b32", sMj, S(2), 3), salu("s_and_b32", sMj, sMj, 3), salu("s_lshr_b32", sNj, S(2), 5)]
    elif o.map2 == 2:
        ids = [salu("s_and_b32", sB2, S(2), 6), salu("s_bfe_u32", sT0, S(2), 3 | (1 << 16)), salu("s_add_u32", sB2, sB2, sT0), salu("s_bfe_u32", sMj, S(2), 4 | (2 << 16)),
               salu("s_and_b32", sT0, S(2), 1), salu("s_lshl_b32", sT0, sT0, 2), salu("s_lshr_b32", sNj, S(2), 6), salu("s_add_u32", sNj, sNj, sT0)]
    else:
        ids = [salu("s_and_b32", sB2, S(2), 4), salu("s_bfe_u32", sT0, S(2), 3 | (2 << 16)), salu("s_add_u32", sB2, sB2, sT0), salu("s_bfe_u32", sMj, S(2), 5 | (2 << 16)),
               salu("s_and_b32", sT0, S(2), 3), salu("s_lshl_b32", sT0, sT0, 1), salu("s_lshr_b32", sNj, S(2), 7), salu("s_add_u32", sNj, sNj, sT0)]
    ids += [
           raw(f"s_getreg_b32 {sXcc}, hwreg(HW_REG_XCC_ID, 0, 4)", wr=[sXcc]) if o.local else salu("s_mov_b32", sXcc, 0), salu("s_add_u32", sXcc, sXcc, 1)]
    p.seg([salu("s_mov_b32", sKoff, 3 * 16384), salu("s_mov_b32", sVoff, 2 * 16384), salu("s_mov_b32", sRing, sW4k), salu("s_mov_b32", sCnt, NL)] + ids
          + [wait_lgkm(*[Kf(0, s) for s in range(4)])] + stamp(o, "qepi"))
    T = Tmpl(o)
    p.seg(T.emit(0, 0, 0, 70, fill=kv_dma(o, "V", 1)) + T.emit(0, 70, 0, 74) + stamp(o, "b0") + T.emit(0, 74, 0, 140) + wot_dma(o) + poll_check(vT[0], 1, "L_z") + T.emit(0, 140, 1, 70))
    body = [label("L_aloop")] + T.emit(1, 70, 3, 70)
    t0, t1 = vT[1], vT[2]
    widx = [salu("s_lshl_b32", sT0, sNj, 2), salu("s_add_u32", sT0, sT0, sW), salu("s_lshl_b32", sT0, sT0, 3), valu("v_and_b32", t0, 7, vLane), valu("v_add_u32", t0, sT0, t0)]
    if o.local:
        widx += [salu("s_lshl_b32", sT0, sB, 5), salu("s_sub_u32", sT0, sT0, 32), valu("v_add_u32", t1, sT0, vLane), vcmp("v_cmp_gt_u32", "vcc", 32, vLane), nop(1), cndmask(t0, t1, t0)]
    chk = poll_check(vT[0], -1, "L_wt", vT[7])
    if o.local: chk += [vcmp("v_cmp_eq_u32", "vcc", sXcc, vT[0]), nop(0), raw("s_cmp_eq_u32 vcc_hi, -1", rd=["vcc"], wr=["scc"]), salu("s_cselect_b32", sLocal, 1, 0)]
    sp = {NL - 1 - 0: wot_finish(o),
          NL - 1 - 1: [Wait(vm=0)],
          NL - 1 - 2: [scmp("s_cmp_lg_u32", sW, 0), branch("s_cbranch_scc1", "L_spr")] + with_cond(flag_srd(prod_idx(256)) + [valu("v_mov_b32", vOne, sXcc), flag_store(vOne)], never),
          NL - 1 - 4: srd(srdF, sARG[14], sARG[15], WS_FLG + 256 * 128, 256 * 128) + widx + [valu("v_lshlrev_b32", vT[7], 7, t0)] + poll_issue(vT[0], vT[7])
             + [salu("s_lshl_b32", sT0, sNj, 19), salu("s_add_u32", sT0, sT0, WS_WOT)] + srd(srdWT, sARG[14], sARG[15], sT0, 524288),
          NL - 1 - 5: chk}
    mask = sum(1 << c for c in sp)
    body += [salu("s_sub_u32", sCnt, sCnt, 1), raw(f"s_bitcmp1_b32 {hex(mask)}, {sCnt}", rd=[sCnt], wr=["scc"]), branch("s_cbranch_scc1", "L_sp")]
    disp = [label("L_sp")]
    for c in sp: disp += [scmp("s_cmp_eq_u32", sCnt, c), branch("s_cbranch_scc1", f"L_sp{c}")]
    body += out_of_line(with_cond(disp, never))
    for c, blk in sp.items():
        blk = [label(f"L_sp{c}")] + blk + [branch("s_branch", "L_spr")]
        for i in blk:
            if "cond" not in i.kw: i.kw["cond"] = (lambda e, c=c: NL - 1 - e["k"] == c)
        body += out_of_line(blk)
    body += [label("L_spr"), scmp("s_cmp_lg_u32", sCnt, 0), branch("s_cbranch_scc1", "L_aloop")]
    p.seg(stamp(o, "loop"))
    p.seg(body, envs=[{"k": k} for k in range(NL)], fix=False)
    regs = [g for pr in range(NA) for g in a2_loads(o, pr)]
    dm = [g for j in range(6) for g in a2_dmas(o, j)]
    pf = regs[:8] + dm + regs[8:] if not o.order else regs[:28] + dm + regs[28:]
    v47 = [[v_load(15, dt, c, jh, V15(dt, c))] for c in range(2) for dt in range(4, 8) for jh in range(2)]
    fD, fE, rest = pf[:o.n1], pf[o.n1:o.n1 + o.n2], pf[o.n1 + o.n2:]
    assert o.n1 <= (52 if not o.order else 28) and o.n1 + o.n2 <= 64
    mix = []
    a_, b_ = list(v47), list(fD)
    while a_ or b_:
        if a_: mix.append(a_.pop(0))
        if b_: mix.append(b_.pop(0))
    pre = [valu("v_lshlrev_b32", vA, 4, vLane), salu("s_lshl_b32", sT0, sW, 17), valu("v_add_u32", vA, sT0, vA),
           salu("s_mul_i32", sT0, sMj, o.rm), salu("s_mul_i32", sT1, sNj, o.rn), salu("s_add_u32", sT0, sT0, sT1), salu("s_lshl_b32", sRotA, sT0, 13), salu("s_lshl_b32", sRotB, sT0, 11)]
    fin, rest = final_pv(o, T, fE, rest)
    p.seg(throttle(stamp(o, "loopend") + pre + T.emit(15, 70, 15, 73) + stamp(o, "b15") + T.emit(15, 73, 16, 0, fill=mix) + fin))
    print("prefetch: n1", len(fD), "n2", len(fE), "after flag", len(rest))
    p.seg(stamp(o, "ost") + p2_setup(o))
    ins = flag_srd(prod_idx(0)) + [valu("v_mov_b32", vOne, 1), Wait(vm=0), barrier(), scmp("s_cmp_lg_u32", sW, 0), branch("s_cbranch_scc1", "L_noflag")]
    if o.local:
        fl = [scmp("s_cmp_eq_u32", sLocal, 0), branch("s_cbranch_scc1", "L_relf"), flag_store(vOne, "")]
        ins += with_cond(fl, never) + out_of_line(with_cond([label("L_relf"), raw("buffer_wbl2 sc1"), Wait(vm=0), flag_store(vOne, "sc1"), branch("s_branch", "L_noflag")], never))
    else: ins += with_cond(([raw("buffer_wbl2 sc1"), Wait(vm=0)] if o.wbl2 else []) + [flag_store(vOne, "sc1")], never)
    ins += [label("L_noflag")] + stamp(o, "flag") + throttle(flat(rest[:o.n3]))
    if o.stamps and o.prof == "tail2": ins += [Wait(vm=0)] + stamp(o, "arest")
    ins += flag_srd([salu("s_lshl_b32", sT0, sB2, 2), salu("s_add_u32", sT0, sT0, sW), salu("s_lshl_b32", sT0, sT0, 3)], 1024) + poll_issue(vT[0]) + flat(rest[o.n3:o.n3 + o.n4]) + poll_check(vT[0], 255, "L_ot")
    if o.local:
        ins += [scmp("s_cmp_eq_u32", sLocal, 0), branch("s_cbranch_scc1", "L_acq"), label("L_acqr")]
        ins += out_of_line(with_cond([label("L_acq"), raw("buffer_inv sc1"), Wait(vm=0), branch("s_branch", "L_acqr")], never))
    p.seg(ins + stamp(o, "poll"))
    left = rest[o.n3 + o.n4:]
    assert all(g[-1].kind == "vm_ld" for g in left), "LDS-staged loads must be issued before the poll"
    p.seg(p2_main(o, [(NA - 1 - (len(left) - 1 - j) // 8, g) for j, g in enumerate(left)]))
    p.seg(p2_reduce(o) + stamp(o, "end") + stamp_store(o) + [label("L_exit"), raw("s_endpgm")])
    p.finalize()
    c, nm = est_cycles([i for i in body if "cond" not in i.kw])
    print(f"attention loop body: est {c} cycles for {nm} mfma -> {c/nm*2:.2f} cyc/slot, {len(body)} instrs")
    return p

KD = """.section .rodata,"a"
.p2align 6
.amdhsa_kernel {name}
  .amdhsa_next_free_vgpr 512
  .amdhsa_next_free_sgpr 102
  .amdhsa_accum_offset 256
  .amdhsa_group_segment_fixed_size 0
  .amdhsa_kernarg_size 64
  .amdhsa_user_sgpr_count 2
  .amdhsa_user_sgpr_kernarg_segment_ptr 1
  .amdhsa_system_sgpr_workgroup_id_x 1
.end_amdhsa_kernel
"""
def build(o):
    if not o.local: o.fost = "sc1"; o.fb = "sc1"
    assert not o.local or o.map == "m1"
    p = kernel(o); nm = NAME + "_kernel"
    s = "; generated by gen/gen5.py\n; @launch grid=(256,1,1) block=(256,1,1) lds=163840\n"
    s += '.amdgcn_target "amdgcn-amd-amdhsa--gfx950"\n.text\n'
    s += f".globl {nm}\n.p2align 8\n.type {nm},@function\n{nm}:\n" + p.text() + "\n" + KD.format(name=nm)
    return s
def opts(argv=None):
    ap = argparse.ArgumentParser()
    ap.add_argument("-o", default="cdna_kernels/" + NAME + ".s")
    for k, v in dict(map="m1", ft="", fa="sc1", fb="", fx="", fw="", fkv="nt", fwo="", fost="", fout="", prof="main").items(): ap.add_argument("--" + k, default=v)
    for k, v in dict(kwo=0, kwf=2, kwp=4, prew=0, otouch=0, nost=0, noa=0, lag=8, backlog=2, dstep=8, stamps=0, n1=16, n2=12, n3=60, n4=8, alast=9, span=40, local=0, map2=1, rblk=1, rm=1, rn=1, order=1, wbl2=0, nper=0, ntch=2, kfin=6).items(): ap.add_argument("--" + k, type=int, default=v)
    return ap.parse_args(argv)
if __name__ == "__main__":
    o = opts(); s = build(o); open(o.o, "w").write(s); print("wrote", o.o, len(s), "bytes")
```
